```python
import torch

def _softmax(x, axis=-1):
    return torch.softmax(x, dim=axis)
def _gelu(x):
    return torch.nn.functional.gelu(x, approximate="tanh")
def _silu(x):
    return torch.nn.functional.silu(x)
def _sigmoid(x):
    return torch.sigmoid(x)
def _layernorm(x, axis=-1, eps=1e-5):
    m = x.mean(dim=axis, keepdim=True)
    v = x.var(dim=axis, keepdim=True, unbiased=False)
    return (x - m) / torch.sqrt(v + eps)
def _scatter_add(tgt, idx, src, axis=0):
    return tgt.clone().index_add_(axis, idx, src)
def _segment_sum(src, seg, n):
    out = torch.zeros((n,) + src.shape[1:], dtype=src.dtype)
    return out.index_add_(0, seg, src)
def _pad(x, pw):
    flat = tuple(v for pair in reversed(pw) for v in pair)
    return torch.nn.functional.pad(x, flat)

kernel_name = 'standalone__qk_norm__prompt'

def setup_inputs():

    _w = (lambda a: (lambda t: t.to(torch.bfloat16) if t.is_floating_point() else t)(torch.as_tensor(a)))
    B, H, S, D = 1, 32, 2048, 1024
    Dh = D // H
    return {
        "q": _w((lambda *s: torch.randn(*s, dtype=torch.bfloat16) * 0.05)(B, H, S, Dh)),
        "k": _w((lambda *s: torch.randn(*s, dtype=torch.bfloat16) * 0.05)(B, H, S, Dh)),
        "v": _w((lambda *s: torch.randn(*s, dtype=torch.bfloat16) * 0.8)(B, H, S, Dh)),
        "t": _w(torch.abs((lambda *s: torch.randn(*s, dtype=torch.bfloat16) * 0.8)(H)) + 1.0),
    }

def reference(q, k, v, t):
    eps = 1e-6
    qn = q / (torch.sqrt((q * q).sum(axis=-1, keepdims=True)) + eps)
    kn = k / (torch.sqrt((k * k).sum(axis=-1, keepdims=True)) + eps)
    logits = torch.einsum('bhqd,bhkd->bhqk', qn, kn) * t[None, :, None, None]
    attn = _softmax(logits, axis=-1)
    return torch.einsum('bhqk,bhkd->bhqd', attn, v)
```

```python
import re

def R(prefix, a, n=1):
    return f"{prefix}{a}" if n == 1 else f"{prefix}[{a}:{a+n-1}]"

class Reg:
    def __init__(self, f, b, n=1):
        self.f, self.b, self.n = f, b, n
    def __str__(self): return R(self.f, self.b, self.n)
    def sub(self, off, n=1):
        assert off + n <= self.n, (self, off, n)
        return Reg(self.f, self.b + off, n)
    def __getitem__(self, i): return self.sub(i, 1)
    def regs(self): return [f"{self.f}{self.b+i}" for i in range(self.n)]

def regs_of(*ops):
    out = []
    for o in ops:
        if isinstance(o, Reg): out += o.regs()
        elif o in ("vcc", "m0", "exec", "scc"): out.append(o)
    return out

class I:
    def __init__(self, text, kind, rd=(), wr=(), passes=0, srcc=(), ab=(), tag=None, need=(), cost=None, states=1):
        self.text = text; self.kind = kind
        self.rd = list(rd); self.wr = list(wr)
        self.passes = passes; self.srcc = list(srcc); self.ab = list(ab)
        self.tag = tag
        self.need = list(need)
        self.cost = cost; self.states = states
    def __repr__(self): return self.text

TRANS = ("v_exp_f32", "v_rcp_f32", "v_sqrt_f32", "v_rsq_f32", "v_log_f32")

def valu(op, d, *src, mods="", extra_rd=(), extra_wr=()):
    kind = "trans" if op in TRANS else "valu"
    rd = regs_of(*src) + list(extra_rd)
    if op in ("v_fmac_f32",): rd += regs_of(d)
    t = f"{op} {d}, " + ", ".join(str(s) for s in src) + (" " + mods if mods else "")
    return I(t, kind, rd=rd, wr=regs_of(d) + list(extra_wr))

def permswap(a, b):
    return I(f"v_permlane32_swap_b32 {a}, {b}", "perm", rd=regs_of(a, b), wr=regs_of(a, b))

def mfma(op, d, a, b, c):
    passes = {"v_mfma_f32_32x32x16_bf16": 8, "v_mfma_f32_16x16x32_bf16": 4, "v_mfma_f32_4x4x4_16b_bf16": 2}[op]
    return I(f"{op} {d}, {a}, {b}, {c}", "mfma", rd=regs_of(a, b, c), wr=regs_of(d), passes=passes,
             srcc=regs_of(c), ab=regs_of(a, b), cost=a.n + b.n)

def smfmac(op, d, a, b, idx):
    passes = {"v_smfmac_f32_32x32x32_bf16": 8, "v_smfmac_f32_16x16x64_bf16": 4}[op]
    return I(f"{op} {d}, {a}, {b}, {idx}", "mfma", rd=regs_of(a, b, idx, d), wr=regs_of(d), passes=passes,
             srcc=regs_of(d), ab=regs_of(a, b, idx), cost=a.n + b.n)

def salu(op, d, *src, scc_w=None):
    t = f"{op} {d}" + "".join(f", {s}" for s in src)
    wr = regs_of(d)
    rd = regs_of(*src)
    if op.startswith("s_cmp"):
        rd += wr; wr = []
    return I(t, "salu", rd=rd, wr=wr)

def ds_read(op, d, addr, off=0, tag=None, need=()):
    assert 0 <= off < 65536, off
    return I(f"{op} {d}, {addr}" + (f" offset:{off}" if off else ""), "ds", rd=regs_of(addr), wr=regs_of(d), tag=tag, need=need)

def ds_write(op, addr, data, off=0, tag=None, need=()):
    assert 0 <= off < 65536, off
    return I(f"{op} {addr}, {data}" + (f" offset:{off}" if off else ""), "ds", rd=regs_of(addr, data), tag=tag, need=need)

def dma(voff, srd, soff, off=0, tag=None, need=()):
    assert 0 <= off < 4096
    return I(f"buffer_load_dwordx4 {voff}, {srd}, {soff} offen" + (f" offset:{off}" if off else "") + " lds", "vmem",
             rd=regs_of(voff, srd, soff) + ["m0"], tag=tag, need=need)

def bufload(op, d, voff, srd, soff, off=0, tag=None):
    return I(f"{op} {d}, {voff}, {srd}, {soff} offen" + (f" offset:{off}" if off else ""), "vmem",
             rd=regs_of(voff, srd, soff), wr=regs_of(d), tag=tag)

def bufstore(op, data, voff, srd, soff, off=0, tag=None, mods=""):
    return I(f"{op} {data}, {voff}, {srd}, {soff} offen" + (f" offset:{off}" if off else "") + (" " + mods if mods else ""), "vmem",
             rd=regs_of(data, voff, srd, soff), tag=tag or "store")

def wait(*tags):
    i = I("WAIT", "wait"); i.tags = list(tags); return i

def raw(text, kind="salu", rd=(), wr=(), states=1):
    return I(text, kind, rd=rd, wr=wr, states=states)

def nop(n):
    assert 1 <= n <= 16
    return I(f"s_nop {n-1}", "nop", states=n)

def label(name): return I(f"{name}:", "label", states=0)
def comment(t): return I(f"; {t}", "label", states=0)

def resolve_waits(prog, check=True):
    out = []
    lg = []
    vm = []
    pend = {}
    for ins in prog:
        if ins.kind == "wait":
            n_l = None; n_v = None
            for q, nm in ((lg, "l"), (vm, "v")):
                last = -1
                for i, o in enumerate(q):
                    if o.tag in ins.tags: last = i
                if last >= 0:
                    n = len(q) - 1 - last
                    if nm == "l": n_l = min(n, 15)
                    else: n_v = min(n, 63)
            parts = []
            if n_v is not None:
                parts.append(f"vmcnt({n_v})"); done = vm[:len(vm) - n_v]; vm = vm[len(vm) - n_v:]
                for o in done:
                    for r in o.wr:
                        if pend.get(r) is o: del pend[r]
            if n_l is not None:
                parts.append(f"lgkmcnt({n_l})"); done = lg[:len(lg) - n_l]; lg = lg[len(lg) - n_l:]
                for o in done:
                    for r in o.wr:
                        if pend.get(r) is o: del pend[r]
            if parts:
                out.append(I("s_waitcnt " + " ".join(parts), "salu"))
            continue
        if ins.kind == "waitall":
            lg = []; vm = []; pend = {}
            out.append(ins); continue
        if check:
            for r in ins.rd + ins.wr:
                if r in pend:
                    raise Exception(f"uncovered load result {r} ({pend[r]}) used by {ins}")
            for t in ins.need:
                for o in lg + vm:
                    if o.tag == t: raise Exception(f"{ins} needs tag {t} but {o} still outstanding")
        if ins.kind == "ds":
            lg.append(ins)
            for r in ins.wr: pend[r] = ins
        elif ins.kind == "vmem":
            vm.append(ins)
            for r in ins.wr: pend[r] = ins
        out.append(ins)
    return out

def _need(p, c):
    n = 0
    pw = set(p.wr);
    isv = lambda k: k in ("valu", "trans", "perm")
    if isv(p.kind):
        vw = {r for r in pw if r[0] in "va" and r not in ("vcc",)}
        sw = {r for r in pw if r[0] == "s" or r == "vcc"}
        if c.kind == "mfma" and vw & set(c.rd): n = max(n, 2)
        if p.kind == "trans" and c.kind in ("valu", "perm") and vw & set(c.rd): n = max(n, 1)
        if c.kind == "perm" and vw & set(c.rd): n = max(n, 2)
        if "readfirstlane" in c.text and vw & set(c.rd): n = max(n, 1)
        if "dpp" in c.text and vw & set(c.rd): n = max(n, 2)
        if sw & set(c.rd):
            if isv(c.kind): n = max(n, 2)
            if c.kind == "vmem": n = max(n, 5)
            if c.kind == "salu": n = max(n, 1)
    if p.kind == "mfma":
        T = {2: 0, 4: 1, 8: 2}[p.passes]
        if c.kind == "mfma":
            if pw & set(c.ab): n = max(n, (5, 8, 12)[T])
            if pw & set(c.srcc):
                if c.srcc == p.wr and c.passes == p.passes: n = max(n, (2, 0, 0)[T])
                else: n = max(n, (4, 6, 10)[T])
            elif pw & set(c.wr):
                n = max(n, (4, 6, 10)[T] if c.passes < p.passes else 0)
        elif isv(c.kind) or c.kind in ("ds", "vmem"):
            if pw & (set(c.rd) | set(c.wr)): n = max(n, (5, 8, 12)[T])
            if isv(c.kind) and set(p.srcc) & set(c.wr): n = max(n, (1, 3, 7)[T])
    if p.kind == "salu" and "m0" in pw and c.kind == "vmem" and "m0" in c.rd: n = max(n, 1)
    if p.kind in ("vmem", "ds") and ("dwordx4" in p.text or "b128" in p.text) and ("store" in p.text or "write" in p.text):
        if isv(c.kind) and set(p.rd) & set(c.wr): n = max(n, 2)
    return n

def fix_hazards(prog, report=None):
    out = []
    for ins in prog:
        if ins.kind != "label":
            need = 0; dist = 0
            for p in reversed(out):
                if dist >= 12: break
                if p.kind != "label":
                    k = _need(p, ins) - dist
                    if k > need: need = k; who = p
                dist += p.states
            if need > 0:
                if report is not None: report.append((need, str(who), str(ins)))
                out.append(nop(need))
        out.append(ins)
    return out

def simulate(prog):
    t = 0; pipe = 0; shadow = 0
    for ins in prog:
        if ins.kind == "label": continue
        if ins.kind == "mfma":
            t = max(t, pipe, shadow); pipe = t + 4 * ins.passes; shadow = t + ins.cost; t += 4
        elif ins.kind == "trans": t = max(t, shadow) + 8
        elif ins.kind in ("valu", "perm"): t = max(t, shadow) + 4
        elif ins.kind in ("ds", "vmem"): t = max(t, shadow - 2) + 4
        elif ins.kind == "nop": t += 4 * ins.states
        else: t += 4
    return max(t, shadow)

def emit(prog):
    return "\n".join(("" if i.kind == "label" else "    ") + i.text for i in prog)
```

```python
import sys
from asmlib import *

V = lambda b, n=1: Reg("v", b, n)
A = lambda b, n=1: Reg("a", b, n)
S = lambda b, n=1: Reg("s", b, n)

STAMP = "--stamp" in sys.argv
vTid = V(0); vDmaK = V(1); vDmaV = V(2); vVT = V(3); vSS = V(4, 4); vTR = V(8, 2); vMask = V(10, 2)
vIdx = V(12); vC = V(13); vWr = V(14); vTmp = V(15); vRd = V(16, 3); vOut = V(19)
vOnes = V(20, 4)
vG = V(24, 4); vSs = V(28); vRr = V(29); vRr2 = V(30); vDummy = V(31); vBd = V(32, 4)
vM = V(36, 8)
vSb = [V(48, 16), V(64, 16), V(80, 16)]
vKf = [V(96 + 8 * i, 8) for i in range(4)]
vVf = [V(128, 8), V(136, 8)]
vX = V(144, 16); vT = V(160, 16); vY = V(176, 16)
Qf = [V(192, 8), V(200, 8)] + [A(120 + 8 * i, 8) for i in range(6)]
Of = [V(208, 16), V(224, 16)] + [A(16 * i, 16) for i in range(6)]
Lf = [V(240, 4), V(244, 4)] + [A(96 + 4 * i, 4) for i in range(6)]
NAGPR = 168
sQp = S(4, 2); sKp = S(6, 2); sVp = S(8, 2); sTp = S(10, 2); sOp = S(12, 2)
srdQ = S(16, 4); srdK = S(20, 4); srdV = S(24, 4); srdO = S(28, 4)
sW = S(32); sHead = S(33); sKoff = S(34); sQoff = S(35); sWb = S(36); sT = S(37); sTmp = S(38); sTmp2 = S(39)
sM1 = S(40, 2); sM2 = S(42, 2); sM3 = S(44, 2); sPc = S(46, 2); sDoff = S(48); sDbg = S(50, 2); srdD = S(52, 4)
sSt = [S(56 + 2 * i, 2) for i in range(8)]
XCH = 131072
LDS_BYTES = XCH + 16384
SLOT = 8192
M32 = "v_mfma_f32_32x32x16_bf16"; M4 = "v_mfma_f32_4x4x4_16b_bf16"
S32 = "v_smfmac_f32_32x32x32_bf16"; S16 = "v_smfmac_f32_16x16x64_bf16"
TH_BITS = 0x41800000

def stamp(i):
    if not STAMP: return []
    return [raw(f"s_memrealtime {sSt[i]}", "salu")]

def dma_pair(kind, p, tagp=""):
    off = (p % 4) * SLOT + (4096 if kind == "V" else 0)
    ops = [salu("s_add_u32", "m0", sWb, off), salu("s_add_u32", sDoff, sKoff, p * 4096)]
    ops[0].wr = ["m0"]
    srd = srdK if kind == "K" else srdV
    vo = vDmaK if kind == "K" else vDmaV
    for j in range(4):
        ops.append(dma(vo, srd, sDoff, 1024 * j, tag=f"{tagp}{kind}{p}"))
    return ops

def norm_ops(off, need, X, T, Y, G, ss, rr, rr2, Bd, dst, scale=None, tg="n"):
    o = {}
    o["xr"] = [ds_read("ds_read_b128", X.sub(4 * j, 4), vSS[j], off, tag=tg + "x", need=[need]) for j in range(4)]
    o["xw"] = [wait(tg + "x")]
    o["g"] = [mfma(M4, G, X.sub(2 * i, 2), X.sub(2 * i, 2), 0 if i == 0 else G) for i in range(8)]
    sc = [valu("v_cndmask_b32", ss, G[0], G[1], sM1), valu("v_cndmask_b32", ss, ss, G[2], sM2), valu("v_cndmask_b32", ss, ss, G[3], sM3),
          valu("v_sqrt_f32", ss, ss), valu("v_add_f32", ss, "0x358637bd", ss), valu("v_rcp_f32", ss, ss)]
    if scale is not None: sc.append(valu("v_mul_f32", ss, ss, scale))
    sc += [valu("v_cvt_pk_bf16_f32", rr, ss, ss), valu("v_cvt_pk_bf16_f32", rr2, ss, ss), permswap(rr, rr2),
           valu("v_and_b32", Bd[0], rr, vMask[0]), valu("v_and_b32", Bd[1], rr, vMask[1]),
           valu("v_and_b32", Bd[2], rr2, vMask[0]), valu("v_and_b32", Bd[3], rr2, vMask[1])]
    o["sc"] = sc
    o["tr"] = [ds_read("ds_read_b64_tr_b16", T.sub(8 * t + 2 * m, 2), vTR[m >> 1], off + 2048 * t + 8 * (m & 1), tag=tg + "t", need=[need])
               for t in range(2) for m in range(4)]
    o["tw"] = [wait(tg + "t")]
    yb = lambda t: Y.sub(16 * t, 16) if Y.n == 32 else Y
    o["m"] = [mfma(M4, yb(t).sub(4 * m, 4), T.sub(8 * t + 2 * m, 2), Bd.sub(2 * t, 2), 0) for t in range(2) for m in range(4)]
    o["cv"] = [valu("v_cvt_pk_bf16_f32", dst[t][i], yb(t)[2 * i], yb(t)[2 * i + 1]) for t in range(2) for i in range(8)]
    return o

def v_reads(kt, tagp=""):
    off = ((kt >> 1) % 4) * SLOT + (kt & 1) * 2048
    return [ds_read("ds_read_b64_tr_b16", vVf[kt % 2].sub(4 * p + 2 * u, 2), vVT, off + 1024 * p + 256 * u, tag=f"{tagp}vf{kt}", need=[f"{tagp}V{kt>>1}"])
            for p in range(2) for u in range(2)]

def order():
    seq = []
    for p in range(7):
        seq += [(2 * p, j) for j in range(8)] + [(2 * p + 1, j) for j in range(8)]
    seq += [(14, j) for j in range(2, 8)] + [(15, j) for j in range(2, 8)] + [(14, 0), (14, 1), (15, 0), (15, 1)]
    return seq

def qk(n, seq):
    kt, j = seq[n]; D = vSb[n % 3]
    return [mfma(M32, D, vKf[kt % 4].sub(0, 4), Qf[j].sub(0, 4), 0), mfma(M32, D, vKf[kt % 4].sub(4, 4), Qf[j].sub(4, 4), D)]
def pv(n, h, seq):
    kt, j = seq[n]; P = vSb[n % 3].sub(8 * h, 8)
    return [smfmac(S32, Of[j], vVf[kt % 2].sub(4 * h, 4), P, vIdx), smfmac(S16, Lf[j], vOnes, P, vIdx)]

EQ = [V(96 + 4 * i, 4) for i in range(4)] + [V(144 + 4 * i, 4) for i in range(12)] + [V(24 + 4 * i, 4) for i in range(3)] + \
     [V(44, 4), V(248, 4), V(252, 4), V(40, 4), V(4, 4)]
EL = [V(1), V(2), V(3), V(8), V(9), V(10)]
PART = 5120

def main(mode, qreads, tagp):
    seq = order()
    sh = {}
    mid = {}
    end = {}
    def put(d, n, g, ops): d.setdefault((n, g), []).extend(ops if isinstance(ops, list) else [ops])
    for p in range(8):
        b = 16 * p
        if p < 7:
            o = norm_ops(((p + 1) % 4) * SLOT, f"{tagp}K{p+1}", vX, vT, vY, vG, vSs, vRr, vRr2, vBd,
                         [vKf[(2 * p + 2) % 4], vKf[(2 * p + 3) % 4]], tg=f"{tagp}n{p+1}")
            d0 = 2 if (p == 0 and qreads) else 0
            put(sh, b + d0, 1, wait(f"{tagp}K{p+1}"))
            put(sh, b + d0, 2, o["xr"][0:2]); put(sh, b + d0, 3, o["xr"][2:4])
            put(sh, b + d0 + 1, 3, o["xw"])
            for i in range(8): put(mid, b + d0 + 1 + i // 2, 3 + 2 * (i & 1), o["g"][i])
            for i in range(8): put(sh, b + d0 + 2 + i // 4, 2 + i % 4, o["tr"][i])
            sc = o["sc"]
            pos = [(5, 1), (5, 2), (5, 3), (5, 4), (5, 5), (6, 0), (6, 1), (6, 1), (6, 3), (6, 4), (6, 4), (6, 5), (6, 5)]
            for i, x in enumerate(sc): put(end, b + d0 + pos[i][0], pos[i][1], x)
            put(sh, b + d0 + 7, 2, o["tw"])
            for i in range(8):
                n_, g_ = b + d0 + 7 + i // 2, 3 + 2 * (i & 1)
                put(mid, n_, g_, o["m"][i])
                n2, g2 = (n_, 5) if g_ == 3 else (n_ + 1, 1)
                put(end, n2, g2, o["cv"][2 * i: 2 * i + 2])
        if mode != "max":
            vr = v_reads(2 * p + 1, tagp)
            n0 = b + 1 if not (p == 0 and qreads) else b + 4
            put(sh, n0, 4, vr[0:2]); put(sh, n0, 5, vr[2:4])
            put(sh, b + (7 if p < 7 else 5), 4, wait(f"{tagp}vf{2*p+1}"))
            if p < 7:
                vr = v_reads(2 * p + 2, tagp)
                put(sh, b + 9, 1, wait(f"{tagp}V{p+1}"))
                put(sh, b + 9, 2, vr[0:2]); put(sh, b + 9, 4, vr[2:4])
                put(sh, b + 15, 4, wait(f"{tagp}vf{2*p+2}"))
        if p + 3 < 8:
            for kind, n0 in (("K", b + 12), ("V", b + 13)):
                if mode == "max" and kind == "V": continue
                d = dma_pair(kind, p + 3, tagp)
                put(sh, n0, 0, d[0]); put(sh, n0, 1, d[1])
                for j in range(4): put(sh, n0, 2 + j, d[2 + j])
    if qreads:
        put(sh, 0, 0, [wait("qw"), raw("s_barrier", "salu")])
        k = 0
        for j in range(2, 8):
            for f in range(2):
                put(sh, k // 5, 1 + k % 5, ds_read("ds_read_b128", Qf[j].sub(4 * f, 4), vRd[(j >> 1) - 1], (j & 1) * 2048 + 1024 * f, tag=f"q{j}"))
                k += 1
        for j in range(2, 8):
            put(sh, j - 2, 5, wait(f"q{j}"))
    if mode != "max":
        for j in range(2, 8):
            n = 118 + (j - 2)
            w = [ds_write("ds_write_b128", vWr, Of[j].sub(4 * k, 4), (j - 2) * PART + 1024 * k, tag="pw") for k in range(4)]
            w.append(ds_write("ds_write_b32", vWr, Lf[j][0], (j - 2) * PART + 4096, tag="pw"))
            for k in range(5): put(sh, n + 2, 1 + k, w[k])
        for s in range(1, 4):
            put(sh, 113, s, [salu("s_sub_u32", sTmp, sW, s), salu("s_and_b32", sTmp, sTmp, 3)])
            put(end, 113, s, [salu("s_lshl_b32", sTmp, sTmp, 15), valu("v_add_u32", vRd[s - 1], sTmp, vDmaV)])
        put(sh, 126, 0, [wait("pw"), raw("s_barrier", "salu")])
        k = 0
        for sl in range(2):
            for s in range(1, 4):
                j = 2 * s + sl
                rr = [ds_read("ds_read_b128", EQ[(sl * 3 + s - 1) * 4 + q], vRd[s - 1], (j - 2) * PART + 1024 * q, tag=f"pr{sl}") for q in range(4)]
                rr.append(ds_read("ds_read_b32", EL[sl * 3 + s - 1], vRd[s - 1], (j - 2) * PART + 4096, tag=f"pr{sl}"))
                for x in rr:
                    g = 1 + k // 3
                    put(sh, 126 + g // 6, g % 6, x); k += 1
    prog = qk(0, seq)
    ne = [3, 3, 3, 2, 3, 2]
    for n in range(128):
        kt, j = seq[n]
        X = vSb[n % 3]
        ms = (qk(n + 1, seq) if n < 127 else [None, None])
        if mode == "max": ms += [None] * 4
        else: ms += (pv(n - 1, 1, seq) if n > 0 else [None, None]) + pv(n, 0, seq)
        prog.append(comment(f"tile {n}: key tile {kt} slot {j}"))
        e = 0
        for g in range(6):
            if ms[g] is not None: prog.append(ms[g])
            prog += sh.pop((n, g), [])
            for t in range(ne[g]):
                x = X[e]
                if mode == "max":
                    if e & 1: prog.append(valu("v_max3_f32", vM[j], vM[j], X[e - 1], x))
                else:
                    if mode == "slow": prog.append(valu("v_sub_f32", x, x, vM[j]))
                    prog.append(valu("v_exp_f32", x, x))
                e += 1
                if t == 0: prog += mid.pop((n, g), [])
            prog += end.pop((n, g), [])
    assert not sh and not mid and not end, (sh.keys(), mid.keys(), end.keys())
    if mode != "max": prog += pv(127, 1, seq)
    return prog

def epilogue():
    p = []
    for sl in range(2):
        O = Of[sl]; L = Lf[sl][0]
        p.append(wait(f"pr{sl}"))
        q = lambda s, i: EQ[(sl * 3 + s) * 4 + i // 4].sub(i % 4, 2)
        for i in range(0, 16, 2): p.append(valu("v_pk_add_f32", q(0, i), q(0, i), q(1, i)))
        p.append(valu("v_add_f32", EL[sl * 3], EL[sl * 3], EL[sl * 3 + 1]))
        for i in range(0, 16, 2): p.append(valu("v_pk_add_f32", q(0, i), q(0, i), q(2, i)))
        p.append(valu("v_add_f32", EL[sl * 3], EL[sl * 3], EL[sl * 3 + 2]))
        p.append(valu("v_add_f32", L, L, EL[sl * 3]))
        p.append(valu("v_rcp_f32", L, L))
        for i in range(0, 16, 2): p.append(valu("v_pk_add_f32", O.sub(i, 2), O.sub(i, 2), q(0, i)))
        for i in range(0, 16, 2): p.append(valu("v_pk_mul_f32", O.sub(i, 2), O.sub(i, 2), Lf[sl].sub(0, 2), mods="op_sel_hi:[1,0]"))
        for i in range(8): p.append(valu("v_cvt_pk_bf16_f32", O[i], O[2 * i], O[2 * i + 1]))
        for k in range(2): p.append(bufstore("buffer_store_dwordx4", O.sub(4 * k, 4), vOut, srdO, sQoff, 2048 * sl + 16 * k))
    if STAMP:
        p += stamp(4)
        p.append(raw("s_waitcnt vmcnt(0)", "waitall"))
        p += stamp(5)
        p.append(raw("s_waitcnt lgkmcnt(0)", "waitall"))
        p += [salu("s_lshl_b32", sTmp, S(2), 2), salu("s_add_u32", sTmp, sTmp, sW), salu("s_lshl_b32", sTmp, sTmp, 6), valu("v_mov_b32", V(48), 0)]
        for i in range(6):
            p.append(valu("v_mov_b32", V(50), sSt[i][0]))
            p.append(bufstore("buffer_store_dword", V(50), V(48), srdD, sTmp, 4 * i))
            p.append(nop(2))
    p.append(raw("s_endpgm", "salu"))
    return p

def initial_dma(tagp, with_q):
    p = []
    if with_q:
        p.append(salu("s_add_u32", "m0", sWb, 3 * SLOT)); p[-1].wr = ["m0"]
        p.append(nop(1))
        for j in range(4): p.append(dma(vDmaK, srdQ, sQoff, 1024 * j, tag="Q"))
    for pp in range(3):
        p += dma_pair("K", pp, tagp) + dma_pair("V", pp, tagp)
    return p

def interleave(a, b):
    out = []
    for i in range(max(len(a), len(b))):
        if i < len(a): out.append(a[i])
        if i < len(b): out.append(b[i])
    return out

def prologue():
    p = []
    p += stamp(0)
    p.append(raw("s_load_dwordx8 s[4:11], s[0:1], 0", "salu", wr=S(4, 8).regs()))
    p.append(raw("s_load_dwordx2 s[12:13], s[0:1], 32", "salu", wr=S(12, 2).regs()))
    if STAMP: p.append(raw(f"s_load_dwordx2 {sDbg}, s[0:1], 48", "salu", wr=sDbg.regs()))
    p.append(salu("s_cmp_ge_u32", S(2), 256))
    p.append(raw("s_cbranch_scc1 L_end", "salu"))
    p.append(raw(f"s_getpc_b64 {sPc}", "salu", wr=sPc.regs()))
    p.append(valu("v_lshlrev_b32", vTmp, 7, vTid))
    p.append(I(f"global_load_dword {vDummy}, {vTmp}, {sPc}", "vmem", rd=regs_of(vTmp, sPc), wr=regs_of(vDummy), tag="pf"))
    p.append(valu("v_lshrrev_b32", vTmp, 6, vTid))
    p.append(valu("v_and_b32", vTid, 63, vTid))
    p.append(I(f"v_readfirstlane_b32 {sW}, {vTmp}", "valu", rd=regs_of(vTmp), wr=regs_of(sW)))
    lane = vTid
    t0, t1, t2, t3 = V(48), V(49), V(50), V(51)
    p.append(valu("v_lshlrev_b32", vDmaV, 4, lane))
    p.append(valu("v_and_b32", t0, 0x30, lane))
    p.append(valu("v_xor_b32", vDmaK, t0, vDmaV))
    p += [salu("s_and_b32", sHead, S(2), 7), salu("s_lshl_b32", sHead, sHead, 2), salu("s_bfe_u32", sTmp, S(2), 0x20003), salu("s_add_u32", sHead, sHead, sTmp),
          salu("s_lshl_b32", sWb, sW, 15), salu("s_lshl_b32", sTmp, sHead, 17), salu("s_add_u32", sKoff, sTmp, sWb),
          salu("s_lshr_b32", sTmp2, S(2), 5), salu("s_lshl_b32", sTmp2, sTmp2, 14), salu("s_add_u32", sQoff, sTmp, sTmp2),
          salu("s_lshl_b32", sTmp2, sW, 12), salu("s_add_u32", sQoff, sQoff, sTmp2),
          salu("s_lshl_b32", sTmp, sHead, 1), salu("s_and_b32", sTmp, sTmp, 0x3c)]
    for srd in (srdQ, srdK, srdV, srdO):
        p += [salu("s_mov_b32", srd[2], 0x400000), salu("s_mov_b32", srd[3], 0x20000)]
    p.append(raw("s_waitcnt lgkmcnt(0)", "salu"))
    p.append(raw(f"s_load_dword {sT}, {sTp}, {sTmp}", "salu", rd=regs_of(sTp, sTmp), wr=regs_of(sT)))
    for srd, ptr in ((srdQ, sQp), (srdK, sKp), (srdV, sVp), (srdO, sOp)):
        p += [salu("s_mov_b32", srd[0], ptr[0]), salu("s_mov_b32", srd[1], ptr[1])]
    if STAMP:
        p += [salu("s_mov_b32", srdD[0], sDbg[0]), salu("s_mov_b32", srdD[1], sDbg[1]), salu("s_mov_b32", srdD[2], 0x100000), salu("s_mov_b32", srdD[3], 0x20000)]
    p += initial_dma("", True)
    p += stamp(1)
    p.append(valu("v_lshlrev_b32", t0, 6, lane))
    p.append(valu("v_lshlrev_b32", t1, 2, lane))
    p.append(valu("v_and_b32", t1, 0x30, t1))
    p.append(valu("v_add3_u32", vSS[0], t0, t1, sWb))
    for j in range(1, 4): p.append(valu("v_xor_b32", vSS[j], 16 * j, vSS[0]))
    p.append(valu("v_and_b32", t0, 3, lane))
    p.append(valu("v_bfe_u32", t1, lane, 2, 2))
    p.append(valu("v_bfe_u32", t2, lane, 4, 1))
    p.append(valu("v_lshrrev_b32", t3, 5, lane))
    a, b_ = V(52), V(53)
    p.append(valu("v_lshlrev_b32", a, 10, t2))
    p.append(valu("v_lshl_add_u32", a, t0, 8, a))
    p.append(valu("v_lshl_add_u32", a, t1, 6, a))
    p.append(valu("v_lshlrev_b32", b_, 1, t3))
    p.append(valu("v_xor_b32", b_, b_, t0))
    p.append(valu("v_lshl_add_u32", a, b_, 4, a))
    p.append(valu("v_add_u32", vTR[0], sWb, a))
    p.append(valu("v_xor_b32", vTR[1], 16, vTR[0]))
    p.append(valu("v_lshlrev_b32", a, 9, t3))
    p.append(valu("v_lshl_add_u32", a, t1, 6, a))
    p.append(valu("v_lshl_add_u32", a, t2, 4, a))
    p.append(valu("v_and_b32", b_, 1, t0))
    p.append(valu("v_lshl_add_u32", a, b_, 5, a))
    p.append(valu("v_lshrrev_b32", b_, 1, t0))
    p.append(valu("v_lshl_add_u32", a, b_, 3, a))
    p.append(valu("v_add_u32", a, sWb, a))
    p.append(valu("v_add_u32", vVT, 0x1000, a))
    p.append(valu("v_and_b32", b_, 1, lane))
    p.append(valu("v_lshlrev_b32", b_, 4, b_))
    p.append(valu("v_mov_b32", a, 0xffff))
    p.append(valu("v_lshlrev_b32", a, b_, a))
    for m, pat in ((sM1, 0x22222222), (sM2, 0x44444444), (sM3, 0x88888888)):
        p += [salu("s_mov_b32", m[0], pat), salu("s_mov_b32", m[1], pat)]
    p += [salu("s_mov_b32", "vcc_lo", 0xcccccccc), salu("s_mov_b32", "vcc_hi", 0xcccccccc)]
    p.append(valu("v_cndmask_b32", vMask[1], 0, a, "vcc"))
    p.append(valu("v_xor_b32", vMask[0], vMask[1], a))
    p.append(valu("v_mov_b32", vIdx, 0xdddddddd))
    p += [salu("s_mov_b32", "vcc_lo", 0xf0f0f0f0), salu("s_mov_b32", "vcc_hi", 0xf0f0f0f0)]
    p.append(valu("v_mov_b32", a, 0x3f803f80))
    p.append(valu("v_cndmask_b32", vOnes[2], 0, a, "vcc"))
    p.append(valu("v_cndmask_b32", vOnes[3], 0, a, "vcc"))
    p.append(valu("v_xor_b32", vOnes[0], vOnes[2], a))
    p.append(valu("v_xor_b32", vOnes[1], vOnes[2], a))
    p.append(valu("v_add_u32", vWr, sWb, vDmaV))
    p.append(valu("v_and_b32", a, 31, lane))
    p.append(valu("v_lshlrev_b32", a, 6, a))
    p.append(valu("v_lshl_add_u32", vOut, t3, 5, a))
    for s in range(4):
        p += [salu("s_add_u32", sTmp, sW, s), salu("s_and_b32", sTmp, sTmp, 3), salu("s_lshl_b32", sTmp, sTmp, 12), salu("s_add_u32", sTmp, sTmp, XCH)]
        p.append(valu("v_add_u32", vTmp if s == 0 else vRd[s - 1], sTmp, vDmaV))
    for j in range(8):
        for Rg in (Of[j], Lf[j]):
            for i in range(Rg.n):
                p.append(valu("v_mov_b32" if Rg.f == "v" else "v_accvgpr_write_b32", Rg[i], 0))
    p.append(raw("s_waitcnt lgkmcnt(0)", "salu"))
    p += [salu("s_lshl_b32", sTmp, sT, 16), salu("s_and_b32", sTmp2, sT, 0xffff0000), salu("s_bitcmp1_b32", sHead, 0),
          salu("s_cselect_b32", sT, sTmp2, sTmp)]
    p[-2].rd += p[-2].wr; p[-2].wr = []
    p.append(valu("v_mov_b32", vC, 0x3fb8aa3b))
    p.append(valu("v_mul_f32", vC, sT, vC))
    p.append(salu("s_and_b32", sT, sT, 0x7fffffff))
    oq = norm_ops(3 * SLOT, "Q", V(48, 16), V(64, 16), V(80, 16), V(112, 4), V(116), V(117), V(118), V(120, 4), [Qf[0], Qf[1]], scale=vC, tg="nq")
    ok = norm_ops(0, "K0", vX, vT, vY, vG, vSs, vRr, vRr2, vBd, [vKf[0], vKf[1]], tg="n0")
    p.append(wait("Q")); p += stamp(2)
    p += oq["xr"] + oq["tr"]
    p.append(wait("K0")); p += ok["xr"]
    p += oq["xw"] + oq["g"][:2] + ok["tr"] + ok["xw"]
    p += interleave(oq["g"][2:], ok["g"])
    p += interleave(oq["sc"], ok["sc"])
    p += oq["tw"] + ok["tw"]
    p.append(wait("V0")); p += v_reads(0)
    p += oq["m"][:4] + ok["m"][:4] + oq["cv"][:8] + oq["m"][4:] + ok["cv"][:8] + ok["m"][4:] + oq["cv"][8:]
    for t in range(2):
        for f in range(2):
            p.append(ds_write("ds_write_b128", vTmp, Qf[t].sub(4 * f, 4), 2048 * t + 1024 * f, tag="qw"))
    p += ok["cv"][8:]
    p.append(wait("vf0"))
    p.append(salu("s_cmp_gt_u32", sT, TH_BITS))
    p.append(raw("s_cbranch_scc1 L_slow", "salu"))
    p += stamp(3)
    return p

def slow_path():
    p = [label("L_slow"), raw("s_waitcnt vmcnt(0) lgkmcnt(0)", "waitall"), nop(16)]
    for j in range(8): p.append(valu("v_mov_b32", vM[j], 0xff800000))
    p += main("max", True, "")
    p += [raw("s_waitcnt vmcnt(0) lgkmcnt(0)", "waitall"), nop(16), raw("s_barrier", "salu")]
    t0 = V(48); a = V(49)
    p.append(valu("v_lshrrev_b32", a, 2, vDmaV))
    for j in range(8):
        p += [valu("v_mov_b32", t0, vM[j]), permswap(vM[j], t0), valu("v_max_f32", vM[j], vM[j], t0)]
        p += [salu("s_lshl_b32", sTmp, sW, 1), salu("s_add_u32", sTmp, sTmp, j), salu("s_and_b32", sTmp, sTmp, 7), salu("s_lshl_b32", sTmp, sTmp, 8),
              salu("s_add_u32", sTmp, sTmp, XCH), valu("v_add_u32", V(56 + j), sTmp, a), salu("s_lshl_b32", sTmp2, sW, 11),
              valu("v_add_u32", V(50), sTmp2, V(56 + j)), ds_write("ds_write_b32", V(50), vM[j], 0, tag="mw")]
    p += [wait("mw"), raw("s_barrier", "salu")]
    for j in range(8):
        for w in range(4): p.append(ds_read("ds_read_b32", V(64 + w), V(56 + j), 2048 * w, tag="mr"))
        p.append(wait("mr"))
        p += [valu("v_max_f32", vM[j], V(64), V(65)), valu("v_max3_f32", vM[j], vM[j], V(66), V(67))]
    p += initial_dma("z", False)
    ok = norm_ops(0, "zK0", vX, vT, vY, vG, vSs, vRr, vRr2, vBd, [vKf[0], vKf[1]], tg="zn0")
    p.append(wait("zK0"))
    p += ok["xr"] + ok["tr"] + ok["xw"] + ok["g"] + ok["sc"] + ok["tw"] + ok["m"][:4] + ok["cv"][:8] + ok["m"][4:] + ok["cv"][8:]
    p.append(wait("zV0")); p += v_reads(0, "z"); p.append(wait("zvf0"))
    p += main("slow", False, "z")
    p += epilogue()
    return p

HDR = open("standalone__qk_norm__prompt.s.ref").read().split("; Override launch")[0]
def build():
    rep = []
    pro = prologue(); mn = main("fast", True, ""); ep = epilogue()
    fast = fix_hazards(resolve_waits(pro + mn + ep), rep)
    nm = fix_hazards(resolve_waits([raw("", "waitall")] + main("fast", True, ""), check=False))
    print("est main cycles", simulate(nm), "prologue", simulate(fix_hazards(resolve_waits(prologue()))), "epilogue", simulate(ep), file=sys.stderr)
    for r in rep: print("nop", r, file=sys.stderr)
    slow = fix_hazards(resolve_waits(slow_path()))
    txt = HDR + f"; @launch grid=(256,1,1) block=(256,1,1) lds={LDS_BYTES}\n"
    txt += """.amdgcn_target "amdgcn-amd-amdhsa--gfx950"
.text
.globl standalone__qk_norm__prompt_kernel
.p2align 8
.type standalone__qk_norm__prompt_kernel,@function
standalone__qk_norm__prompt_kernel:
"""
    txt += emit(fast) + "\n" + emit(slow) + "\nL_end:\n    s_endpgm\n"
    txt += f""".section .rodata,"a"
.p2align 6
.amdhsa_kernel standalone__qk_norm__prompt_kernel
  .amdhsa_next_free_vgpr {256 + NAGPR}
  .amdhsa_next_free_sgpr 80
  .amdhsa_accum_offset 256
  .amdhsa_group_segment_fixed_size 0
  .amdhsa_kernarg_size 56
  .amdhsa_user_sgpr_count 2
  .amdhsa_user_sgpr_kernarg_segment_ptr 1
  .amdhsa_system_sgpr_workgroup_id_x 1
.end_amdhsa_kernel
"""
    return txt

if __name__ == "__main__":
    out = [a for a in sys.argv[1:] if not a.startswith("--")]
    open(out[0] if out else "standalone__qk_norm__prompt.s", "w").write(build())
```

```python
import sys
from asmlib import *

V = lambda b, n=1: Reg("v", b, n)
A = lambda b, n=1: Reg("a", b, n)
S = lambda b, n=1: Reg("s", b, n)

STAMP = "--stamp" in sys.argv or "--dbg" in sys.argv
DBG = "--dbg" in sys.argv
ABL = [a[6:] for a in sys.argv if a.startswith("--abl=")]
vTid = V(0); vDmaK = V(1); vDmaV = V(2); vVT = V(3); vSS = V(4, 4); vTR = V(8, 2); vMask = V(10, 2)
vIdx = V(12); vC = V(13); vWr = V(14); vTmp = V(15); vRd = V(16, 3); vOut = V(19)
vOnes = V(20, 4)
vG = V(24, 4); vSs = V(28); vRr = V(29); vRr2 = V(30); vDummy = V(31); vBd = V(32, 4)
vM = V(36, 8)
vSb = [V(48, 16), V(64, 16), V(80, 16)]
vKf = [V(96 + 8 * i, 8) for i in range(4)]
vVf = [V(128, 8), V(136, 8)]
vX = V(144, 16); vT = V(160, 16); vY = V(176, 16)
Qf = [V(192, 8), V(200, 8)] + [A(120 + 8 * i, 8) for i in range(6)]
Of = [V(208, 16), V(224, 16)] + [A(16 * i, 16) for i in range(6)]
Lf = [V(240, 4), V(244, 4)] + [A(96 + 4 * i, 4) for i in range(6)]
NAGPR = 168
sQp = S(4, 2); sKp = S(6, 2); sVp = S(8, 2); sTp = S(10, 2); sOp = S(12, 2)
srdQ = S(16, 4); srdK = S(20, 4); srdV = S(24, 4); srdO = S(28, 4)
sW = S(32); sHead = S(33); sKoff = S(34); sQoff = S(35); sWb = S(36); sT = S(37); sTmp = S(38); sTmp2 = S(39)
sM1 = S(40, 2); sM2 = S(42, 2); sM3 = S(44, 2); sPc = S(46, 2); sDoff = S(48); sDbg = S(50, 2); srdD = S(52, 4)
sSt = [S(56 + 2 * i, 2) for i in range(8)]
XCH = 131072
LDS_BYTES = XCH + 16384
SLOT = 8192
M32 = "v_mfma_f32_32x32x16_bf16"; M4 = "v_mfma_f32_4x4x4_16b_bf16"
S32 = "v_smfmac_f32_32x32x32_bf16"; S16 = "v_smfmac_f32_16x16x64_bf16"
TH_BITS = 0x41800000

def stamp(i):
    if not STAMP: return []
    r = [raw(f"s_memrealtime {sSt[i]}", "salu")]
    if i in (3, 4): r.append(raw(f"s_memtime {sSt[i+3]}", "salu"))
    return r

def dma_pair(kind, p, tagp=""):
    off = (p % 4) * SLOT + (4096 if kind == "V" else 0)
    ops = [salu("s_add_u32", "m0", sWb, off), salu("s_add_u32", sDoff, sKoff, p * 4096)]
    ops[0].wr = ["m0"]
    srd = srdK if kind == "K" else srdV
    vo = vDmaK if kind == "K" else vDmaV
    for j in range(4):
        ops.append(dma(vo, srd, sDoff, 1024 * j, tag=f"{tagp}{kind}{p}"))
    return ops

def norm_ops(off, need, X, T, Y, G, ss, rr, rr2, Bd, dst, scale=None, tg="n"):
    o = {}
    o["xr"] = [ds_read("ds_read_b128", X.sub(4 * j, 4), vSS[j], off, tag=tg + "x", need=[need]) for j in range(4)]
    o["xw"] = [wait(tg + "x")]
    o["g"] = [mfma(M4, G, X.sub(2 * i, 2), X.sub(2 * i, 2), 0 if i == 0 else G) for i in range(8)]
    sc = [valu("v_cndmask_b32", ss, G[0], G[1], sM1), valu("v_cndmask_b32", ss, ss, G[2], sM2), valu("v_cndmask_b32", ss, ss, G[3], sM3),
          valu("v_sqrt_f32", ss, ss), valu("v_add_f32", ss, "0x358637bd", ss), valu("v_rcp_f32", ss, ss)]
    if scale is not None: sc.append(valu("v_mul_f32", ss, ss, scale))
    sc += [valu("v_cvt_pk_bf16_f32", rr, ss, ss), valu("v_cvt_pk_bf16_f32", rr2, ss, ss), permswap(rr, rr2),
           valu("v_and_b32", Bd[0], rr, vMask[0]), valu("v_and_b32", Bd[1], rr, vMask[1]),
           valu("v_and_b32", Bd[2], rr2, vMask[0]), valu("v_and_b32", Bd[3], rr2, vMask[1])]
    o["sc"] = sc
    o["tr"] = [ds_read("ds_read_b64_tr_b16", T.sub(8 * t + 2 * m, 2), vTR[m >> 1], off + 2048 * t + 8 * (m & 1), tag=tg + "t", need=[need])
               for t in range(2) for m in range(4)]
    o["tw"] = [wait(tg + "t")]
    yb = lambda t: Y.sub(16 * t, 16) if Y.n == 32 else Y
    o["m"] = [mfma(M4, yb(t).sub(4 * m, 4), T.sub(8 * t + 2 * m, 2), Bd.sub(2 * t, 2), 0) for t in range(2) for m in range(4)]
    o["cv"] = [valu("v_cvt_pk_bf16_f32", dst[t][i], yb(t)[2 * i], yb(t)[2 * i + 1]) for t in range(2) for i in range(8)]
    return o

def v_reads(kt, tagp=""):
    off = ((kt >> 1) % 4) * SLOT + (kt & 1) * 2048
    return [ds_read("ds_read_b64_tr_b16", vVf[kt % 2].sub(4 * p + 2 * u, 2), vVT, off + 1024 * p + 256 * u, tag=f"{tagp}vf{kt}", need=[f"{tagp}V{kt>>1}"])
            for p in range(2) for u in range(2)]

def order():
    seq = []
    for p in range(7):
        seq += [(2 * p, j) for j in range(8)] + [(2 * p + 1, j) for j in range(8)]
    seq += [(14, j) for j in range(2, 8)] + [(15, j) for j in range(2, 8)] + [(14, 0), (14, 1), (15, 0), (15, 1)]
    return seq

def qk(n, seq):
    kt, j = seq[n]; D = vSb[n % 3]
    return [mfma(M32, D, vKf[kt % 4].sub(0, 4), Qf[j].sub(0, 4), 0), mfma(M32, D, vKf[kt % 4].sub(4, 4), Qf[j].sub(4, 4), D)]
def pv(n, h, seq):
    kt, j = seq[n]; P = vSb[n % 3].sub(8 * h, 8)
    return [smfmac(S32, Of[j], vVf[kt % 2].sub(4 * h, 4), P, vIdx), smfmac(S16, Lf[j], vOnes, P, vIdx)]

EQ = [V(96 + 4 * i, 4) for i in range(4)] + [V(144 + 4 * i, 4) for i in range(12)] + [V(24 + 4 * i, 4) for i in range(3)] + \
     [V(44, 4), V(248, 4), V(252, 4), V(40, 4), V(4, 4)]
EL = [V(1), V(2), V(3), V(8), V(9), V(10)]
PART = 5120

def main(mode, qreads, tagp):
    seq = order()
    sh = {}
    mid = {}
    end = {}
    def put(d, n, g, ops): d.setdefault((n, g), []).extend(ops if isinstance(ops, list) else [ops])
    for p in range(8):
        b = 16 * p
        if p < 7:
            o = norm_ops(((p + 1) % 4) * SLOT, f"{tagp}K{p+1}", vX, vT, vY, vG, vSs, vRr, vRr2, vBd,
                         [vKf[(2 * p + 2) % 4], vKf[(2 * p + 3) % 4]], tg=f"{tagp}n{p+1}")
            d0 = 2 if (p == 0 and qreads) else 0
            put(sh, b + d0, 1, wait(f"{tagp}K{p+1}"))
            put(sh, b + d0, 2, o["xr"][0:2]); put(sh, b + d0, 3, o["xr"][2:4])
            put(sh, b + d0 + 1, 3, o["xw"])
            for i in range(8): put(mid, b + d0 + 1 + i // 2, 3 + 2 * (i & 1), o["g"][i])
            for i in range(8): put(sh, b + d0 + 2 + i // 4, 2 + i % 4, o["tr"][i])
            sc = o["sc"]
            pos = [(5, 1), (5, 2), (5, 3), (5, 4), (5, 5), (6, 0), (6, 1), (6, 1), (6, 3), (6, 4), (6, 4), (6, 5), (6, 5)]
            for i, x in enumerate(sc): put(end, b + d0 + pos[i][0], pos[i][1], x)
            put(sh, b + d0 + 7, 2, o["tw"])
            for i in range(8):
                n_, g_ = b + d0 + 7 + i // 2, 3 + 2 * (i & 1)
                put(mid, n_, g_, o["m"][i])
                n2, g2 = (n_, 5) if g_ == 3 else (n_ + 1, 1)
                put(end, n2, g2, o["cv"][2 * i: 2 * i + 2])
        if mode != "max":
            vr = v_reads(2 * p + 1, tagp)
            n0 = b + 1 if not (p == 0 and qreads) else b + 4
            put(sh, n0, 4, vr[0:2]); put(sh, n0, 5, vr[2:4])
            put(sh, b + (7 if p < 7 else 5), 4, wait(f"{tagp}vf{2*p+1}"))
            if p < 7:
                vr = v_reads(2 * p + 2, tagp)
                put(sh, b + 9, 1, wait(f"{tagp}V{p+1}"))
                put(sh, b + 9, 2, vr[0:2]); put(sh, b + 9, 4, vr[2:4])
                put(sh, b + 15, 4, wait(f"{tagp}vf{2*p+2}"))
        if p + 3 < 8:
            for kind, n0 in (("K", b + 12), ("V", b + 13)):
                if mode == "max" and kind == "V": continue
                d = dma_pair(kind, p + 3, tagp)
                put(sh, n0, 0, d[0]); put(sh, n0, 1, d[1])
                for j in range(4): put(sh, n0, 2 + j, d[2 + j])
    if qreads:
        put(sh, 0, 0, [wait("qw"), raw("s_barrier", "salu")])
        k = 0
        for j in range(2, 8):
            for f in range(2):
                put(sh, k // 5, 1 + k % 5, ds_read("ds_read_b128", Qf[j].sub(4 * f, 4), vRd[(j >> 1) - 1], (j & 1) * 2048 + 1024 * f, tag=f"q{j}"))
                k += 1
        for j in range(2, 8):
            put(sh, j - 2, 5, wait(f"q{j}"))
    if mode != "max":
        for j in range(2, 8):
            n = 118 + (j - 2)
            w = [ds_write("ds_write_b128", vWr, Of[j].sub(4 * k, 4), (j - 2) * PART + 1024 * k, tag="pw") for k in range(4)]
            w.append(ds_write("ds_write_b32", vWr, Lf[j][0], (j - 2) * PART + 4096, tag="pw"))
            for k in range(5): put(sh, n + 2, 1 + k, w[k])
        for s in range(1, 4):
            put(sh, 113, s, [salu("s_sub_u32", sTmp, sW, s), salu("s_and_b32", sTmp, sTmp, 3)])
            put(end, 113, s, [salu("s_lshl_b32", sTmp, sTmp, 15), valu("v_add_u32", vRd[s - 1], sTmp, vDmaV)])
        put(sh, 126, 0, [wait("pw"), raw("s_barrier", "salu")])
        k = 0
        for sl in range(2):
            for s in range(1, 4):
                j = 2 * s + sl
                rr = [ds_read("ds_read_b128", EQ[(sl * 3 + s - 1) * 4 + q], vRd[s - 1], (j - 2) * PART + 1024 * q, tag=f"pr{sl}") for q in range(4)]
                rr.append(ds_read("ds_read_b32", EL[sl * 3 + s - 1], vRd[s - 1], (j - 2) * PART + 4096, tag=f"pr{sl}"))
                for x in rr:
                    g = 1 + k // 3
                    put(sh, 126 + g // 6, g % 6, x); k += 1
    prog = qk(0, seq)
    ne = [3, 3, 3, 2, 3, 2]
    for n in range(128):
        kt, j = seq[n]
        X = vSb[n % 3]
        ms = (qk(n + 1, seq) if n < 127 else [None, None])
        if mode == "max": ms += [None] * 4
        else: ms += (pv(n - 1, 1, seq) if n > 0 else [None, None]) + pv(n, 0, seq)
        prog.append(comment(f"tile {n}: key tile {kt} slot {j}"))
        e = 0
        for g in range(6):
            skip = (("rs" in ABL and g in (3, 5)) or ("pv" in ABL and g in (2, 4)) or ("qk" in ABL and g in (0, 1) and n > 3))
            if ms[g] is not None and not skip: prog.append(ms[g])
            prog += sh.pop((n, g), [])
            for t in range(ne[g]):
                x = X[e]
                if mode == "max":
                    if e & 1: prog.append(valu("v_max3_f32", vM[j], vM[j], X[e - 1], x))
                else:
                    if mode == "slow": prog.append(valu("v_sub_f32", x, x, vM[j]))
                    if "exp" in ABL: pass
                    elif "expmov" in ABL: prog += [valu("v_mov_b32", x, x), valu("v_mov_b32", x, x)]
                    elif "qk" in ABL: prog.append(valu("v_exp_f32", x, "-" + str(x))); prog[-1].rd = x.regs()
                    else: prog.append(valu("v_exp_f32", x, x))
                e += 1
                if t == 0: prog += mid.pop((n, g), [])
            prog += end.pop((n, g), [])
    assert not sh and not mid and not end, (sh.keys(), mid.keys(), end.keys())
    if mode != "max": prog += pv(127, 1, seq)
    return prog

def epilogue():
    p = []
    for sl in range(2):
        O = Of[sl]; L = Lf[sl][0]
        p.append(wait(f"pr{sl}"))
        q = lambda s, i: EQ[(sl * 3 + s) * 4 + i // 4].sub(i % 4, 2)
        for i in range(0, 16, 2): p.append(valu("v_pk_add_f32", q(0, i), q(0, i), q(1, i)))
        p.append(valu("v_add_f32", EL[sl * 3], EL[sl * 3], EL[sl * 3 + 1]))
        for i in range(0, 16, 2): p.append(valu("v_pk_add_f32", q(0, i), q(0, i), q(2, i)))
        p.append(valu("v_add_f32", EL[sl * 3], EL[sl * 3], EL[sl * 3 + 2]))
        p.append(valu("v_add_f32", L, L, EL[sl * 3]))
        p.append(valu("v_rcp_f32", L, L))
        for i in range(0, 16, 2): p.append(valu("v_pk_add_f32", O.sub(i, 2), O.sub(i, 2), q(0, i)))
        for i in range(0, 16, 2): p.append(valu("v_pk_mul_f32", O.sub(i, 2), O.sub(i, 2), Lf[sl].sub(0, 2), mods="op_sel_hi:[1,0]"))
        for i in range(8): p.append(valu("v_cvt_pk_bf16_f32", O[i], O[2 * i], O[2 * i + 1]))
        for k in range(2): p.append(bufstore("buffer_store_dwordx4", O.sub(4 * k, 4), vOut, srdO, sQoff, 2048 * sl + 16 * k))
    if STAMP:
        p += stamp(4)
        p.append(raw("s_waitcnt vmcnt(0)", "waitall"))
        p += stamp(5)
        p.append(raw("s_waitcnt lgkmcnt(0)", "waitall"))
        p += [salu("s_lshl_b32", sTmp, S(2), 2), salu("s_add_u32", sTmp, sTmp, sW), salu("s_lshl_b32", sTmp, sTmp, 6), valu("v_mov_b32", V(48), 0)]
        if DBG:
            p += [salu("s_mov_b64", "exec", 1)]
            for i in range(6):
                p.append(valu("v_mov_b32", V(50), sSt[i][0]))
                p.append(valu("v_not_b32", V(51), V(50)))
                p.append(bufstore("buffer_atomic_umax", V(50), V(48), srdD, 0, 8 * i + 4))
                p.append(bufstore("buffer_atomic_umax", V(51), V(48), srdD, 0, 8 * i))
                p.append(nop(2))
            p += [salu("s_sub_u32", sTmp, sSt[7][0], sSt[6][0]), valu("v_mov_b32", V(50), sTmp), bufstore("buffer_atomic_umax", V(50), V(48), srdD, 0, 48)]
        for i in range(0 if DBG else 8):
            p.append(valu("v_mov_b32", V(50), sSt[i][0]))
            p.append(bufstore("buffer_store_dword", V(50), V(48), srdD, sTmp, 4 * i))
            p.append(nop(2))
    p.append(raw("s_endpgm", "salu"))
    return p

def initial_dma(tagp, with_q):
    p = []
    if with_q:
        p.append(salu("s_add_u32", "m0", sWb, 3 * SLOT)); p[-1].wr = ["m0"]
        p.append(nop(1))
        for j in range(4): p.append(dma(vDmaK, srdQ, sQoff, 1024 * j, tag="Q"))
    for pp in range(3):
        p += dma_pair("K", pp, tagp) + dma_pair("V", pp, tagp)
    return p

def interleave(a, b):
    out = []
    for i in range(max(len(a), len(b))):
        if i < len(a): out.append(a[i])
        if i < len(b): out.append(b[i])
    return out

def prologue():
    p = []
    p += stamp(0)
    p.append(raw("s_load_dwordx8 s[4:11], s[0:1], 0", "salu", wr=S(4, 8).regs()))
    p.append(raw("s_load_dwordx2 s[12:13], s[0:1], 32", "salu", wr=S(12, 2).regs()))
    if STAMP: p.append(raw(f"s_load_dwordx2 {sDbg}, s[0:1], {40 if DBG else 48}", "salu", wr=sDbg.regs()))
    p.append(salu("s_cmp_ge_u32", S(2), 256))
    p.append(raw("s_cbranch_scc1 L_end", "salu"))
    p.append(raw(f"s_getpc_b64 {sPc}", "salu", wr=sPc.regs()))
    p.append(valu("v_lshlrev_b32", vTmp, 7, vTid))
    p.append(I(f"global_load_dword {vDummy}, {vTmp}, {sPc}", "vmem", rd=regs_of(vTmp, sPc), wr=regs_of(vDummy), tag="pf"))
    p.append(valu("v_lshrrev_b32", vTmp, 6, vTid))
    p.append(valu("v_and_b32", vTid, 63, vTid))
    p.append(I(f"v_readfirstlane_b32 {sW}, {vTmp}", "valu", rd=regs_of(vTmp), wr=regs_of(sW)))
    lane = vTid
    t0, t1, t2, t3 = V(48), V(49), V(50), V(51)
    p.append(valu("v_lshlrev_b32", vDmaV, 4, lane))
    p.append(valu("v_and_b32", t0, 0x30, lane))
    p.append(valu("v_xor_b32", vDmaK, t0, vDmaV))
    p += [salu("s_and_b32", sHead, S(2), 7), salu("s_lshl_b32", sHead, sHead, 2), salu("s_bfe_u32", sTmp, S(2), 0x20003), salu("s_add_u32", sHead, sHead, sTmp),
          salu("s_lshl_b32", sWb, sW, 15), salu("s_lshl_b32", sTmp, sHead, 17), salu("s_add_u32", sKoff, sTmp, sWb),
          salu("s_lshr_b32", sTmp2, S(2), 5), salu("s_lshl_b32", sTmp2, sTmp2, 14), salu("s_add_u32", sQoff, sTmp, sTmp2),
          salu("s_lshl_b32", sTmp2, sW, 12), salu("s_add_u32", sQoff, sQoff, sTmp2),
          salu("s_lshl_b32", sTmp, sHead, 1), salu("s_and_b32", sTmp, sTmp, 0x3c)]
    for srd in (srdQ, srdK, srdV, srdO):
        p += [salu("s_mov_b32", srd[2], 0x400000), salu("s_mov_b32", srd[3], 0x20000)]
    p.append(raw("s_waitcnt lgkmcnt(0)", "salu"))
    p.append(raw(f"s_load_dword {sT}, {sTp}, {sTmp}", "salu", rd=regs_of(sTp, sTmp), wr=regs_of(sT)))
    for srd, ptr in ((srdQ, sQp), (srdK, sKp), (srdV, sVp), (srdO, sOp)):
        p += [salu("s_mov_b32", srd[0], ptr[0]), salu("s_mov_b32", srd[1], ptr[1])]
    if STAMP:
        p += [salu("s_mov_b32", srdD[0], sDbg[0]), salu("s_mov_b32", srdD[1], sDbg[1]), salu("s_mov_b32", srdD[2], 256 if DBG else 0x100000), salu("s_mov_b32", srdD[3], 0x20000)]
    p += initial_dma("", True)
    p += stamp(1)
    p.append(valu("v_lshlrev_b32", t0, 6, lane))
    p.append(valu("v_lshlrev_b32", t1, 2, lane))
    p.append(valu("v_and_b32", t1, 0x30, t1))
    p.append(valu("v_add3_u32", vSS[0], t0, t1, sWb))
    for j in range(1, 4): p.append(valu("v_xor_b32", vSS[j], 16 * j, vSS[0]))
    p.append(valu("v_and_b32", t0, 3, lane))
    p.append(valu("v_bfe_u32", t1, lane, 2, 2))
    p.append(valu("v_bfe_u32", t2, lane, 4, 1))
    p.append(valu("v_lshrrev_b32", t3, 5, lane))
    a, b_ = V(52), V(53)
    p.append(valu("v_lshlrev_b32", a, 10, t2))
    p.append(valu("v_lshl_add_u32", a, t0, 8, a))
    p.append(valu("v_lshl_add_u32", a, t1, 6, a))
    p.append(valu("v_lshlrev_b32", b_, 1, t3))
    p.append(valu("v_xor_b32", b_, b_, t0))
    p.append(valu("v_lshl_add_u32", a, b_, 4, a))
    p.append(valu("v_add_u32", vTR[0], sWb, a))
    p.append(valu("v_xor_b32", vTR[1], 16, vTR[0]))
    p.append(valu("v_lshlrev_b32", a, 9, t3))
    p.append(valu("v_lshl_add_u32", a, t1, 6, a))
    p.append(valu("v_lshl_add_u32", a, t2, 4, a))
    p.append(valu("v_and_b32", b_, 1, t0))
    p.append(valu("v_lshl_add_u32", a, b_, 5, a))
    p.append(valu("v_lshrrev_b32", b_, 1, t0))
    p.append(valu("v_lshl_add_u32", a, b_, 3, a))
    p.append(valu("v_add_u32", a, sWb, a))
    p.append(valu("v_add_u32", vVT, 0x1000, a))
    p.append(valu("v_and_b32", b_, 1, lane))
    p.append(valu("v_lshlrev_b32", b_, 4, b_))
    p.append(valu("v_mov_b32", a, 0xffff))
    p.append(valu("v_lshlrev_b32", a, b_, a))
    for m, pat in ((sM1, 0x22222222), (sM2, 0x44444444), (sM3, 0x88888888)):
        p += [salu("s_mov_b32", m[0], pat), salu("s_mov_b32", m[1], pat)]
    p += [salu("s_mov_b32", "vcc_lo", 0xcccccccc), salu("s_mov_b32", "vcc_hi", 0xcccccccc)]
    p.append(valu("v_cndmask_b32", vMask[1], 0, a, "vcc"))
    p.append(valu("v_xor_b32", vMask[0], vMask[1], a))
    p.append(valu("v_mov_b32", vIdx, 0xdddddddd))
    p += [salu("s_mov_b32", "vcc_lo", 0xf0f0f0f0), salu("s_mov_b32", "vcc_hi", 0xf0f0f0f0)]
    p.append(valu("v_mov_b32", a, 0x3f803f80))
    p.append(valu("v_cndmask_b32", vOnes[2], 0, a, "vcc"))
    p.append(valu("v_cndmask_b32", vOnes[3], 0, a, "vcc"))
    p.append(valu("v_xor_b32", vOnes[0], vOnes[2], a))
    p.append(valu("v_xor_b32", vOnes[1], vOnes[2], a))
    p.append(valu("v_add_u32", vWr, sWb, vDmaV))
    p.append(valu("v_and_b32", a, 31, lane))
    p.append(valu("v_lshlrev_b32", a, 6, a))
    p.append(valu("v_lshl_add_u32", vOut, t3, 5, a))
    for s in range(4):
        p += [salu("s_add_u32", sTmp, sW, s), salu("s_and_b32", sTmp, sTmp, 3), salu("s_lshl_b32", sTmp, sTmp, 12), salu("s_add_u32", sTmp, sTmp, XCH)]
        p.append(valu("v_add_u32", vTmp if s == 0 else vRd[s - 1], sTmp, vDmaV))
    for j in range(8):
        for Rg in (Of[j], Lf[j]):
            for i in range(Rg.n):
                p.append(valu("v_mov_b32" if Rg.f == "v" else "v_accvgpr_write_b32", Rg[i], 0))
    p.append(raw("s_waitcnt lgkmcnt(0)", "salu"))
    p += [salu("s_lshl_b32", sTmp, sT, 16), salu("s_and_b32", sTmp2, sT, 0xffff0000), salu("s_bitcmp1_b32", sHead, 0),
          salu("s_cselect_b32", sT, sTmp2, sTmp)]
    p[-2].rd += p[-2].wr; p[-2].wr = []
    p.append(valu("v_mov_b32", vC, 0x3fb8aa3b))
    p.append(valu("v_mul_f32", vC, sT, vC))
    p.append(salu("s_and_b32", sT, sT, 0x7fffffff))
    oq = norm_ops(3 * SLOT, "Q", V(48, 16), V(64, 16), V(80, 16), V(112, 4), V(116), V(117), V(118), V(120, 4), [Qf[0], Qf[1]], scale=vC, tg="nq")
    ok = norm_ops(0, "K0", vX, vT, vY, vG, vSs, vRr, vRr2, vBd, [vKf[0], vKf[1]], tg="n0")
    p.append(wait("Q")); p += stamp(2)
    p += oq["xr"] + oq["tr"]
    p.append(wait("K0")); p += ok["xr"]
    p += oq["xw"] + oq["g"][:2] + ok["tr"] + ok["xw"]
    p += interleave(oq["g"][2:], ok["g"])
    p += interleave(oq["sc"], ok["sc"])
    p += oq["tw"] + ok["tw"]
    p.append(wait("V0")); p += v_reads(0)
    p += oq["m"][:4] + ok["m"][:4] + oq["cv"][:8] + oq["m"][4:] + ok["cv"][:8] + ok["m"][4:] + oq["cv"][8:]
    for t in range(2):
        for f in range(2):
            p.append(ds_write("ds_write_b128", vTmp, Qf[t].sub(4 * f, 4), 2048 * t + 1024 * f, tag="qw"))
    p += ok["cv"][8:]
    p.append(wait("vf0"))
    p.append(salu("s_cmp_gt_u32", sT, TH_BITS))
    p.append(raw("s_cbranch_scc1 L_slow", "salu"))
    p += stamp(3)
    return p

def slow_path():
    p = [label("L_slow"), raw("s_waitcnt vmcnt(0) lgkmcnt(0)", "waitall"), nop(16)]
    for j in range(8): p.append(valu("v_mov_b32", vM[j], 0xff800000))
    p += main("max", True, "")
    p += [raw("s_waitcnt vmcnt(0) lgkmcnt(0)", "waitall"), nop(16), raw("s_barrier", "salu")]
    t0 = V(48); a = V(49)
    p.append(valu("v_lshrrev_b32", a, 2, vDmaV))
    for j in range(8):
        p += [valu("v_mov_b32", t0, vM[j]), permswap(vM[j], t0), valu("v_max_f32", vM[j], vM[j], t0)]
        p += [salu("s_lshl_b32", sTmp, sW, 1), salu("s_add_u32", sTmp, sTmp, j), salu("s_and_b32", sTmp, sTmp, 7), salu("s_lshl_b32", sTmp, sTmp, 8),
              salu("s_add_u32", sTmp, sTmp, XCH), valu("v_add_u32", V(56 + j), sTmp, a), salu("s_lshl_b32", sTmp2, sW, 11),
              valu("v_add_u32", V(50), sTmp2, V(56 + j)), ds_write("ds_write_b32", V(50), vM[j], 0, tag="mw")]
    p += [wait("mw"), raw("s_barrier", "salu")]
    for j in range(8):
        for w in range(4): p.append(ds_read("ds_read_b32", V(64 + w), V(56 + j), 2048 * w, tag="mr"))
        p.append(wait("mr"))
        p += [valu("v_max_f32", vM[j], V(64), V(65)), valu("v_max3_f32", vM[j], vM[j], V(66), V(67))]
    p += initial_dma("z", False)
    ok = norm_ops(0, "zK0", vX, vT, vY, vG, vSs, vRr, vRr2, vBd, [vKf[0], vKf[1]], tg="zn0")
    p.append(wait("zK0"))
    p += ok["xr"] + ok["tr"] + ok["xw"] + ok["g"] + ok["sc"] + ok["tw"] + ok["m"][:4] + ok["cv"][:8] + ok["m"][4:] + ok["cv"][8:]
    p.append(wait("zV0")); p += v_reads(0, "z"); p.append(wait("zvf0"))
    p += main("slow", False, "z")
    p += epilogue()
    return p

HDR = open("standalone__qk_norm__prompt.s.ref").read().split("; Override launch")[0]
def build():
    rep = []
    pro = prologue(); mn = main("fast", True, ""); ep = epilogue()
    fast = fix_hazards(resolve_waits(pro + mn + ep), rep)
    nm = fix_hazards(resolve_waits([raw("", "waitall")] + main("fast", True, ""), check=False))
    print("est main cycles", simulate(nm), "prologue", simulate(fix_hazards(resolve_waits(prologue()))), "epilogue", simulate(ep), file=sys.stderr)
    for r in rep: print("nop", r, file=sys.stderr)
    slow = fix_hazards(resolve_waits(slow_path()))
    txt = HDR + f"; @launch grid=(256,1,1) block=(256,1,1) lds={LDS_BYTES}\n"
    txt += """.amdgcn_target "amdgcn-amd-amdhsa--gfx950"
.text
.globl standalone__qk_norm__prompt_kernel
.p2align 8
.type standalone__qk_norm__prompt_kernel,@function
standalone__qk_norm__prompt_kernel:
"""
    txt += emit(fast) + "\n" + emit(slow) + "\nL_end:\n    s_endpgm\n"
    txt += f""".section .rodata,"a"
.p2align 6
.amdhsa_kernel standalone__qk_norm__prompt_kernel
  .amdhsa_next_free_vgpr {256 + NAGPR}
  .amdhsa_next_free_sgpr 80
  .amdhsa_accum_offset 256
  .amdhsa_group_segment_fixed_size 0
  .amdhsa_kernarg_size 56
  .amdhsa_user_sgpr_count 2
  .amdhsa_user_sgpr_kernarg_segment_ptr 1
  .amdhsa_system_sgpr_workgroup_id_x 1
.end_amdhsa_kernel
"""
    return txt

if __name__ == "__main__":
    out = [a for a in sys.argv[1:] if not a.startswith("--")]
    open(out[0] if out else "standalone__qk_norm__prompt.s", "w").write(build())
```

```python
import sys
from asmlib import *

V = lambda b, n=1: Reg("v", b, n)
A = lambda b, n=1: Reg("a", b, n)
S = lambda b, n=1: Reg("s", b, n)

STAMP = "--stamp" in sys.argv or "--dbg" in sys.argv
DBG = "--dbg" in sys.argv
SPIN = sum(int(a[7:]) for a in sys.argv if a.startswith("--spin="))
_spin = 0
ABL = [a[6:] for a in sys.argv if a.startswith("--abl=")]
vTid = V(0); vDmaK = V(1); vDmaV = V(2); vVT = V(3); vSS = V(4, 4); vTR = V(8, 2); vMask = V(10, 2)
vIdx = V(12); vC = V(13); vWr = V(14); vTmp = V(15); vRd = V(16, 3); vOut = V(19)
vOnes = V(20, 4)
vG = V(24, 4); vSs = V(28); vRr = V(29); vRr2 = V(30); vDummy = V(31); vBd = V(32, 4)
vM = V(36, 8)
vSb = [V(48, 16), V(64, 16), V(80, 16)]
vKf = [V(96 + 8 * i, 8) for i in range(4)]
vVf = [V(128, 8), V(136, 8)]
vX = V(144, 16); vT = V(160, 16); vY = V(176, 16)
Qf = [V(192, 8), V(200, 8)] + [A(120 + 8 * i, 8) for i in range(6)]
Of = [V(208, 16), V(224, 16)] + [A(16 * i, 16) for i in range(6)]
Lf = [V(240, 4), V(244, 4)] + [A(96 + 4 * i, 4) for i in range(6)]
NAGPR = 168
sQp = S(4, 2); sKp = S(6, 2); sVp = S(8, 2); sTp = S(10, 2); sOp = S(12, 2)
srdQ = S(16, 4); srdK = S(20, 4); srdV = S(24, 4); srdO = S(28, 4)
sW = S(32); sHead = S(33); sKoff = S(34); sQoff = S(35); sWb = S(36); sT = S(37); sTmp = S(38); sTmp2 = S(39)
sM1 = S(40, 2); sM2 = S(42, 2); sM3 = S(44, 2); sPc = S(46, 2); sDoff = S(48); sDbg = S(50, 2); srdD = S(52, 4)
sSt = [S(56 + 2 * i, 2) for i in range(8)]
XCH = 131072
LDS_BYTES = XCH + 16384
SLOT = 8192
M32 = "v_mfma_f32_32x32x16_bf16"; M4 = "v_mfma_f32_4x4x4_16b_bf16"
S32 = "v_smfmac_f32_32x32x32_bf16"; S16 = "v_smfmac_f32_16x16x64_bf16"
TH_BITS = 0x41800000

def stamp(i):
    if SPIN and i == 0: return [raw(f"s_memrealtime {sSt[i]}", "salu")]
    if not STAMP: return []
    r = [raw(f"s_memrealtime {sSt[i]}", "salu")]
    if i in (3, 4): r.append(raw(f"s_memtime {sSt[i+3]}", "salu"))
    return r

def dma_pair(kind, p, tagp=""):
    off = (p % 4) * SLOT + (4096 if kind == "V" else 0)
    ops = [salu("s_add_u32", "m0", sWb, off), salu("s_add_u32", sDoff, sKoff, p * 4096)]
    ops[0].wr = ["m0"]
    srd = srdK if kind == "K" else srdV
    vo = vDmaK if kind == "K" else vDmaV
    for j in range(4):
        ops.append(dma(vo, srd, sDoff, 1024 * j, tag=f"{tagp}{kind}{p}"))
    return ops

def norm_ops(off, need, X, T, Y, G, ss, rr, rr2, Bd, dst, scale=None, tg="n"):
    o = {}
    o["xr"] = [ds_read("ds_read_b128", X.sub(4 * j, 4), vSS[j], off, tag=tg + "x", need=[need]) for j in range(4)]
    o["xw"] = [wait(tg + "x")]
    o["g"] = [mfma(M4, G, X.sub(2 * i, 2), X.sub(2 * i, 2), 0 if i == 0 else G) for i in range(8)]
    sc = [valu("v_cndmask_b32", ss, G[0], G[1], sM1), valu("v_cndmask_b32", ss, ss, G[2], sM2), valu("v_cndmask_b32", ss, ss, G[3], sM3),
          valu("v_sqrt_f32", ss, ss), valu("v_add_f32", ss, "0x358637bd", ss), valu("v_rcp_f32", ss, ss)]
    if scale is not None: sc.append(valu("v_mul_f32", ss, ss, scale))
    sc += [valu("v_cvt_pk_bf16_f32", rr, ss, ss), valu("v_cvt_pk_bf16_f32", rr2, ss, ss), permswap(rr, rr2),
           valu("v_and_b32", Bd[0], rr, vMask[0]), valu("v_and_b32", Bd[1], rr, vMask[1]),
           valu("v_and_b32", Bd[2], rr2, vMask[0]), valu("v_and_b32", Bd[3], rr2, vMask[1])]
    o["sc"] = sc
    o["tr"] = [ds_read("ds_read_b64_tr_b16", T.sub(8 * t + 2 * m, 2), vTR[m >> 1], off + 2048 * t + 8 * (m & 1), tag=tg + "t", need=[need])
               for t in range(2) for m in range(4)]
    o["tw"] = [wait(tg + "t")]
    yb = lambda t: Y.sub(16 * t, 16) if Y.n == 32 else Y
    o["m"] = [mfma(M4, yb(t).sub(4 * m, 4), T.sub(8 * t + 2 * m, 2), Bd.sub(2 * t, 2), 0) for t in range(2) for m in range(4)]
    o["cv"] = [valu("v_cvt_pk_bf16_f32", dst[t][i], yb(t)[2 * i], yb(t)[2 * i + 1]) for t in range(2) for i in range(8)]
    return o

def v_reads(kt, tagp=""):
    off = ((kt >> 1) % 4) * SLOT + (kt & 1) * 2048
    return [ds_read("ds_read_b64_tr_b16", vVf[kt % 2].sub(4 * p + 2 * u, 2), vVT, off + 1024 * p + 256 * u, tag=f"{tagp}vf{kt}", need=[f"{tagp}V{kt>>1}"])
            for p in range(2) for u in range(2)]

def order():
    seq = []
    for p in range(7):
        seq += [(2 * p, j) for j in range(8)] + [(2 * p + 1, j) for j in range(8)]
    seq += [(14, j) for j in range(2, 8)] + [(15, j) for j in range(2, 8)] + [(14, 0), (14, 1), (15, 0), (15, 1)]
    return seq

def qk(n, seq):
    kt, j = seq[n]; D = vSb[n % 3]
    return [mfma(M32, D, vKf[kt % 4].sub(0, 4), Qf[j].sub(0, 4), 0), mfma(M32, D, vKf[kt % 4].sub(4, 4), Qf[j].sub(4, 4), D)]
def pv(n, h, seq):
    kt, j = seq[n]; P = vSb[n % 3].sub(8 * h, 8)
    return [smfmac(S32, Of[j], vVf[kt % 2].sub(4 * h, 4), P, vIdx), smfmac(S16, Lf[j], vOnes, P, vIdx)]

EQ = [V(96 + 4 * i, 4) for i in range(4)] + [V(144 + 4 * i, 4) for i in range(12)] + [V(24 + 4 * i, 4) for i in range(3)] + \
     [V(44, 4), V(248, 4), V(252, 4), V(40, 4), V(4, 4)]
EL = [V(1), V(2), V(3), V(8), V(9), V(10)]
PART = 5120

def main(mode, qreads, tagp):
    seq = order()
    sh = {}
    mid = {}
    end = {}
    def put(d, n, g, ops): d.setdefault((n, g), []).extend(ops if isinstance(ops, list) else [ops])
    for p in range(8):
        b = 16 * p
        if p < 7:
            o = norm_ops(((p + 1) % 4) * SLOT, f"{tagp}K{p+1}", vX, vT, vY, vG, vSs, vRr, vRr2, vBd,
                         [vKf[(2 * p + 2) % 4], vKf[(2 * p + 3) % 4]], tg=f"{tagp}n{p+1}")
            d0 = 2 if (p == 0 and qreads) else 0
            put(sh, b + d0, 1, wait(f"{tagp}K{p+1}"))
            put(sh, b + d0, 2, o["xr"][0:2]); put(sh, b + d0, 3, o["xr"][2:4])
            put(sh, b + d0 + 1, 3, o["xw"])
            for i in range(8): put(mid, b + d0 + 1 + i // 2, 3 + 2 * (i & 1), o["g"][i])
            for i in range(8): put(sh, b + d0 + 2 + i // 4, 2 + i % 4, o["tr"][i])
            sc = o["sc"]
            pos = [(5, 1), (5, 2), (5, 3), (5, 4), (5, 5), (6, 0), (6, 1), (6, 1), (6, 3), (6, 4), (6, 4), (6, 5), (6, 5)]
            for i, x in enumerate(sc): put(end, b + d0 + pos[i][0], pos[i][1], x)
            put(sh, b + d0 + 7, 2, o["tw"])
            for i in range(8):
                n_, g_ = b + d0 + 7 + i // 2, 3 + 2 * (i & 1)
                put(mid, n_, g_, o["m"][i])
                n2, g2 = (n_, 5) if g_ == 3 else (n_ + 1, 1)
                put(end, n2, g2, o["cv"][2 * i: 2 * i + 2])
        if mode != "max":
            vr = v_reads(2 * p + 1, tagp)
            n0 = b + 1 if not (p == 0 and qreads) else b + 4
            put(sh, n0, 4, vr[0:2]); put(sh, n0, 5, vr[2:4])
            put(sh, b + (7 if p < 7 else 5), 4, wait(f"{tagp}vf{2*p+1}"))
            if p < 7:
                vr = v_reads(2 * p + 2, tagp)
                put(sh, b + 9, 1, wait(f"{tagp}V{p+1}"))
                put(sh, b + 9, 2, vr[0:2]); put(sh, b + 9, 4, vr[2:4])
                put(sh, b + 15, 4, wait(f"{tagp}vf{2*p+2}"))
        if p + 3 < 8:
            for kind, n0 in (("K", b + 12), ("V", b + 13)):
                if mode == "max" and kind == "V": continue
                d = dma_pair(kind, p + 3, tagp)
                put(sh, n0, 0, d[0]); put(sh, n0, 1, d[1])
                for j in range(4): put(sh, n0, 2 + j, d[2 + j])
    if qreads:
        put(sh, 0, 0, [wait("qw"), raw("s_barrier", "salu")])
        k = 0
        for j in range(2, 8):
            for f in range(2):
                put(sh, k // 5, 1 + k % 5, ds_read("ds_read_b128", Qf[j].sub(4 * f, 4), vRd[(j >> 1) - 1], (j & 1) * 2048 + 1024 * f, tag=f"q{j}"))
                k += 1
        for j in range(2, 8):
            put(sh, j - 2, 5, wait(f"q{j}"))
    if mode != "max":
        for j in range(2, 8):
            n = 118 + (j - 2)
            w = [ds_write("ds_write_b128", vWr, Of[j].sub(4 * k, 4), (j - 2) * PART + 1024 * k, tag="pw") for k in range(4)]
            w.append(ds_write("ds_write_b32", vWr, Lf[j][0], (j - 2) * PART + 4096, tag="pw"))
            for k in range(5): put(sh, n + 2, 1 + k, w[k])
        for s in range(1, 4):
            put(sh, 113, s, [salu("s_sub_u32", sTmp, sW, s), salu("s_and_b32", sTmp, sTmp, 3)])
            put(end, 113, s, [salu("s_lshl_b32", sTmp, sTmp, 15), valu("v_add_u32", vRd[s - 1], sTmp, vDmaV)])
        put(sh, 126, 0, [wait("pw"), raw("s_barrier", "salu")])
        k = 0
        for sl in range(2):
            for s in range(1, 4):
                j = 2 * s + sl
                rr = [ds_read("ds_read_b128", EQ[(sl * 3 + s - 1) * 4 + q], vRd[s - 1], (j - 2) * PART + 1024 * q, tag=f"pr{sl}") for q in range(4)]
                rr.append(ds_read("ds_read_b32", EL[sl * 3 + s - 1], vRd[s - 1], (j - 2) * PART + 4096, tag=f"pr{sl}"))
                for x in rr:
                    g = 1 + k // 3
                    put(sh, 126 + g // 6, g % 6, x); k += 1
    prog = qk(0, seq)
    ne = [3, 3, 3, 2, 3, 2]
    for n in range(128):
        kt, j = seq[n]
        X = vSb[n % 3]
        ms = (qk(n + 1, seq) if n < 127 else [None, None])
        if mode == "max": ms += [None] * 4
        else: ms += (pv(n - 1, 1, seq) if n > 0 else [None, None]) + pv(n, 0, seq)
        prog.append(comment(f"tile {n}: key tile {kt} slot {j}"))
        e = 0
        for g in range(6):
            skip = (("rs" in ABL and g in (3, 5)) or ("pv" in ABL and g in (2, 4)) or ("qk" in ABL and g in (0, 1) and n > 3))
            if ms[g] is not None and not skip: prog.append(ms[g])
            prog += sh.pop((n, g), [])
            for t in range(ne[g]):
                x = X[e]
                if mode == "max":
                    if e & 1: prog.append(valu("v_max3_f32", vM[j], vM[j], X[e - 1], x))
                else:
                    if mode == "slow": prog.append(valu("v_sub_f32", x, x, vM[j]))
                    if "exp" in ABL: pass
                    elif "expmov" in ABL: prog += [valu("v_mov_b32", x, x), valu("v_mov_b32", x, x)]
                    elif "qk" in ABL: prog.append(valu("v_exp_f32", x, "-" + str(x))); prog[-1].rd = x.regs()
                    else: prog.append(valu("v_exp_f32", x, x))
                e += 1
                if t == 0: prog += mid.pop((n, g), [])
            prog += end.pop((n, g), [])
    assert not sh and not mid and not end, (sh.keys(), mid.keys(), end.keys())
    if mode != "max": prog += pv(127, 1, seq)
    return prog

def epilogue():
    p = []
    for sl in range(2):
        O = Of[sl]; L = Lf[sl][0]
        p.append(wait(f"pr{sl}"))
        q = lambda s, i: EQ[(sl * 3 + s) * 4 + i // 4].sub(i % 4, 2)
        for i in range(0, 16, 2): p.append(valu("v_pk_add_f32", q(0, i), q(0, i), q(1, i)))
        p.append(valu("v_add_f32", EL[sl * 3], EL[sl * 3], EL[sl * 3 + 1]))
        for i in range(0, 16, 2): p.append(valu("v_pk_add_f32", q(0, i), q(0, i), q(2, i)))
        p.append(valu("v_add_f32", EL[sl * 3], EL[sl * 3], EL[sl * 3 + 2]))
        p.append(valu("v_add_f32", L, L, EL[sl * 3]))
        p.append(valu("v_rcp_f32", L, L))
        for i in range(0, 16, 2): p.append(valu("v_pk_add_f32", O.sub(i, 2), O.sub(i, 2), q(0, i)))
        for i in range(0, 16, 2): p.append(valu("v_pk_mul_f32", O.sub(i, 2), O.sub(i, 2), Lf[sl].sub(0, 2), mods="op_sel_hi:[1,0]"))
        for i in range(8): p.append(valu("v_cvt_pk_bf16_f32", O[i], O[2 * i], O[2 * i + 1]))
        for k in range(2): p.append(bufstore("buffer_store_dwordx4", O.sub(4 * k, 4), vOut, srdO, sQoff, 2048 * sl + 16 * k))
    if STAMP:
        p += stamp(4)
        p.append(raw("s_waitcnt vmcnt(0)", "waitall"))
        p += stamp(5)
        p.append(raw("s_waitcnt lgkmcnt(0)", "waitall"))
        p += [salu("s_lshl_b32", sTmp, S(2), 2), salu("s_add_u32", sTmp, sTmp, sW), salu("s_lshl_b32", sTmp, sTmp, 6), valu("v_mov_b32", V(48), 0)]
        if DBG:
            p += [salu("s_mov_b64", "exec", 1)]
            for i in range(6):
                p.append(valu("v_mov_b32", V(50), sSt[i][0]))
                p.append(valu("v_not_b32", V(51), V(50)))
                p.append(bufstore("buffer_atomic_umax", V(50), V(48), srdD, 0, 8 * i + 4))
                p.append(bufstore("buffer_atomic_umax", V(51), V(48), srdD, 0, 8 * i))
                p.append(nop(2))
            p += [salu("s_sub_u32", sTmp, sSt[7][0], sSt[6][0]), valu("v_mov_b32", V(50), sTmp), bufstore("buffer_atomic_umax", V(50), V(48), srdD, 0, 48)]
        for i in range(0 if DBG else 8):
            p.append(valu("v_mov_b32", V(50), sSt[i][0]))
            p.append(bufstore("buffer_store_dword", V(50), V(48), srdD, sTmp, 4 * i))
            p.append(nop(2))
    if SPIN:
        global _spin; _spin += 1
        p += [label(f"L_spin{_spin}"), raw(f"s_memrealtime {sSt[1]}", "salu"), raw("s_waitcnt lgkmcnt(0)", "waitall"), salu("s_sub_u32", sTmp, sSt[1][0], sSt[0][0]),
              salu("s_cmp_lt_u32", sTmp, SPIN), raw(f"s_cbranch_scc1 L_spin{_spin}", "salu")]
    p.append(raw("s_endpgm", "salu"))
    return p

def initial_dma(tagp, with_q):
    p = []
    if with_q:
        p.append(salu("s_add_u32", "m0", sWb, 3 * SLOT)); p[-1].wr = ["m0"]
        p.append(nop(1))
        for j in range(4): p.append(dma(vDmaK, srdQ, sQoff, 1024 * j, tag="Q"))
    for pp in range(3):
        p += dma_pair("K", pp, tagp) + dma_pair("V", pp, tagp)
    return p

def interleave(a, b):
    out = []
    for i in range(max(len(a), len(b))):
        if i < len(a): out.append(a[i])
        if i < len(b): out.append(b[i])
    return out

def prologue():
    p = []
    p += stamp(0)
    p.append(raw("s_load_dwordx8 s[4:11], s[0:1], 0", "salu", wr=S(4, 8).regs()))
    p.append(raw("s_load_dwordx2 s[12:13], s[0:1], 32", "salu", wr=S(12, 2).regs()))
    if STAMP: p.append(raw(f"s_load_dwordx2 {sDbg}, s[0:1], {40 if DBG else 48}", "salu", wr=sDbg.regs()))
    p.append(salu("s_cmp_ge_u32", S(2), 256))
    p.append(raw("s_cbranch_scc1 L_end", "salu"))
    p.append(raw(f"s_getpc_b64 {sPc}", "salu", wr=sPc.regs()))
    p.append(valu("v_lshlrev_b32", vTmp, 7, vTid))
    p.append(I(f"global_load_dword {vDummy}, {vTmp}, {sPc}", "vmem", rd=regs_of(vTmp, sPc), wr=regs_of(vDummy), tag="pf"))
    p.append(valu("v_lshrrev_b32", vTmp, 6, vTid))
    p.append(valu("v_and_b32", vTid, 63, vTid))
    p.append(I(f"v_readfirstlane_b32 {sW}, {vTmp}", "valu", rd=regs_of(vTmp), wr=regs_of(sW)))
    lane = vTid
    t0, t1, t2, t3 = V(48), V(49), V(50), V(51)
    p.append(valu("v_lshlrev_b32", vDmaV, 4, lane))
    p.append(valu("v_and_b32", t0, 0x30, lane))
    p.append(valu("v_xor_b32", vDmaK, t0, vDmaV))
    p += [salu("s_and_b32", sHead, S(2), 7), salu("s_lshl_b32", sHead, sHead, 2), salu("s_bfe_u32", sTmp, S(2), 0x20003), salu("s_add_u32", sHead, sHead, sTmp),
          salu("s_lshl_b32", sWb, sW, 15), salu("s_lshl_b32", sTmp, sHead, 17), salu("s_add_u32", sKoff, sTmp, sWb),
          salu("s_lshr_b32", sTmp2, S(2), 5), salu("s_lshl_b32", sTmp2, sTmp2, 14), salu("s_add_u32", sQoff, sTmp, sTmp2),
          salu("s_lshl_b32", sTmp2, sW, 12), salu("s_add_u32", sQoff, sQoff, sTmp2),
          salu("s_lshl_b32", sTmp, sHead, 1), salu("s_and_b32", sTmp, sTmp, 0x3c)]
    for srd in (srdQ, srdK, srdV, srdO):
        p += [salu("s_mov_b32", srd[2], 0x400000), salu("s_mov_b32", srd[3], 0x20000)]
    p.append(raw("s_waitcnt lgkmcnt(0)", "salu"))
    p.append(raw(f"s_load_dword {sT}, {sTp}, {sTmp}", "salu", rd=regs_of(sTp, sTmp), wr=regs_of(sT)))
    for srd, ptr in ((srdQ, sQp), (srdK, sKp), (srdV, sVp), (srdO, sOp)):
        p += [salu("s_mov_b32", srd[0], ptr[0]), salu("s_mov_b32", srd[1], ptr[1])]
    if STAMP:
        p += [salu("s_mov_b32", srdD[0], sDbg[0]), salu("s_mov_b32", srdD[1], sDbg[1]), salu("s_mov_b32", srdD[2], 256 if DBG else 0x100000), salu("s_mov_b32", srdD[3], 0x20000)]
    p += initial_dma("", True)
    p += stamp(1)
    p.append(valu("v_lshlrev_b32", t0, 6, lane))
    p.append(valu("v_lshlrev_b32", t1, 2, lane))
    p.append(valu("v_and_b32", t1, 0x30, t1))
    p.append(valu("v_add3_u32", vSS[0], t0, t1, sWb))
    for j in range(1, 4): p.append(valu("v_xor_b32", vSS[j], 16 * j, vSS[0]))
    p.append(valu("v_and_b32", t0, 3, lane))
    p.append(valu("v_bfe_u32", t1, lane, 2, 2))
    p.append(valu("v_bfe_u32", t2, lane, 4, 1))
    p.append(valu("v_lshrrev_b32", t3, 5, lane))
    a, b_ = V(52), V(53)
    p.append(valu("v_lshlrev_b32", a, 10, t2))
    p.append(valu("v_lshl_add_u32", a, t0, 8, a))
    p.append(valu("v_lshl_add_u32", a, t1, 6, a))
    p.append(valu("v_lshlrev_b32", b_, 1, t3))
    p.append(valu("v_xor_b32", b_, b_, t0))
    p.append(valu("v_lshl_add_u32", a, b_, 4, a))
    p.append(valu("v_add_u32", vTR[0], sWb, a))
    p.append(valu("v_xor_b32", vTR[1], 16, vTR[0]))
    p.append(valu("v_lshlrev_b32", a, 9, t3))
    p.append(valu("v_lshl_add_u32", a, t1, 6, a))
    p.append(valu("v_lshl_add_u32", a, t2, 4, a))
    p.append(valu("v_and_b32", b_, 1, t0))
    p.append(valu("v_lshl_add_u32", a, b_, 5, a))
    p.append(valu("v_lshrrev_b32", b_, 1, t0))
    p.append(valu("v_lshl_add_u32", a, b_, 3, a))
    p.append(valu("v_add_u32", a, sWb, a))
    p.append(valu("v_add_u32", vVT, 0x1000, a))
    p.append(valu("v_and_b32", b_, 1, lane))
    p.append(valu("v_lshlrev_b32", b_, 4, b_))
    p.append(valu("v_mov_b32", a, 0xffff))
    p.append(valu("v_lshlrev_b32", a, b_, a))
    for m, pat in ((sM1, 0x22222222), (sM2, 0x44444444), (sM3, 0x88888888)):
        p += [salu("s_mov_b32", m[0], pat), salu("s_mov_b32", m[1], pat)]
    p += [salu("s_mov_b32", "vcc_lo", 0xcccccccc), salu("s_mov_b32", "vcc_hi", 0xcccccccc)]
    p.append(valu("v_cndmask_b32", vMask[1], 0, a, "vcc"))
    p.append(valu("v_xor_b32", vMask[0], vMask[1], a))
    p.append(valu("v_mov_b32", vIdx, 0xdddddddd))
    p += [salu("s_mov_b32", "vcc_lo", 0xf0f0f0f0), salu("s_mov_b32", "vcc_hi", 0xf0f0f0f0)]
    p.append(valu("v_mov_b32", a, 0x3f803f80))
    p.append(valu("v_cndmask_b32", vOnes[2], 0, a, "vcc"))
    p.append(valu("v_cndmask_b32", vOnes[3], 0, a, "vcc"))
    p.append(valu("v_xor_b32", vOnes[0], vOnes[2], a))
    p.append(valu("v_xor_b32", vOnes[1], vOnes[2], a))
    p.append(valu("v_add_u32", vWr, sWb, vDmaV))
    p.append(valu("v_and_b32", a, 31, lane))
    p.append(valu("v_lshlrev_b32", a, 6, a))
    p.append(valu("v_lshl_add_u32", vOut, t3, 5, a))
    for s in range(4):
        p += [salu("s_add_u32", sTmp, sW, s), salu("s_and_b32", sTmp, sTmp, 3), salu("s_lshl_b32", sTmp, sTmp, 12), salu("s_add_u32", sTmp, sTmp, XCH)]
        p.append(valu("v_add_u32", vTmp if s == 0 else vRd[s - 1], sTmp, vDmaV))
    for j in range(8):
        for Rg in (Of[j], Lf[j]):
            for i in range(Rg.n):
                p.append(valu("v_mov_b32" if Rg.f == "v" else "v_accvgpr_write_b32", Rg[i], 0))
    p.append(raw("s_waitcnt lgkmcnt(0)", "salu"))
    p += [salu("s_lshl_b32", sTmp, sT, 16), salu("s_and_b32", sTmp2, sT, 0xffff0000), salu("s_bitcmp1_b32", sHead, 0),
          salu("s_cselect_b32", sT, sTmp2, sTmp)]
    p[-2].rd += p[-2].wr; p[-2].wr = []
    p.append(valu("v_mov_b32", vC, 0x3fb8aa3b))
    p.append(valu("v_mul_f32", vC, sT, vC))
    p.append(salu("s_and_b32", sT, sT, 0x7fffffff))
    oq = norm_ops(3 * SLOT, "Q", V(48, 16), V(64, 16), V(80, 16), V(112, 4), V(116), V(117), V(118), V(120, 4), [Qf[0], Qf[1]], scale=vC, tg="nq")
    ok = norm_ops(0, "K0", vX, vT, vY, vG, vSs, vRr, vRr2, vBd, [vKf[0], vKf[1]], tg="n0")
    p.append(wait("Q")); p += stamp(2)
    p += oq["xr"] + oq["tr"]
    p.append(wait("K0")); p += ok["xr"]
    p += oq["xw"] + oq["g"][:2] + ok["tr"] + ok["xw"]
    p += interleave(oq["g"][2:], ok["g"])
    p += interleave(oq["sc"], ok["sc"])
    p += oq["tw"] + ok["tw"]
    p.append(wait("V0")); p += v_reads(0)
    p += oq["m"][:4] + ok["m"][:4] + oq["cv"][:8] + oq["m"][4:] + ok["cv"][:8] + ok["m"][4:] + oq["cv"][8:]
    for t in range(2):
        for f in range(2):
            p.append(ds_write("ds_write_b128", vTmp, Qf[t].sub(4 * f, 4), 2048 * t + 1024 * f, tag="qw"))
    p += ok["cv"][8:]
    p.append(wait("vf0"))
    p.append(salu("s_cmp_gt_u32", sT, TH_BITS))
    p.append(raw("s_cbranch_scc1 L_slow", "salu"))
    p += stamp(3)
    return p

def slow_path():
    p = [label("L_slow"), raw("s_waitcnt vmcnt(0) lgkmcnt(0)", "waitall"), nop(16)]
    for j in range(8): p.append(valu("v_mov_b32", vM[j], 0xff800000))
    p += main("max", True, "")
    p += [raw("s_waitcnt vmcnt(0) lgkmcnt(0)", "waitall"), nop(16), raw("s_barrier", "salu")]
    t0 = V(48); a = V(49)
    p.append(valu("v_lshrrev_b32", a, 2, vDmaV))
    for j in range(8):
        p += [valu("v_mov_b32", t0, vM[j]), permswap(vM[j], t0), valu("v_max_f32", vM[j], vM[j], t0)]
        p += [salu("s_lshl_b32", sTmp, sW, 1), salu("s_add_u32", sTmp, sTmp, j), salu("s_and_b32", sTmp, sTmp, 7), salu("s_lshl_b32", sTmp, sTmp, 8),
              salu("s_add_u32", sTmp, sTmp, XCH), valu("v_add_u32", V(56 + j), sTmp, a), salu("s_lshl_b32", sTmp2, sW, 11),
              valu("v_add_u32", V(50), sTmp2, V(56 + j)), ds_write("ds_write_b32", V(50), vM[j], 0, tag="mw")]
    p += [wait("mw"), raw("s_barrier", "salu")]
    for j in range(8):
        for w in range(4): p.append(ds_read("ds_read_b32", V(64 + w), V(56 + j), 2048 * w, tag="mr"))
        p.append(wait("mr"))
        p += [valu("v_max_f32", vM[j], V(64), V(65)), valu("v_max3_f32", vM[j], vM[j], V(66), V(67))]
    p += initial_dma("z", False)
    ok = norm_ops(0, "zK0", vX, vT, vY, vG, vSs, vRr, vRr2, vBd, [vKf[0], vKf[1]], tg="zn0")
    p.append(wait("zK0"))
    p += ok["xr"] + ok["tr"] + ok["xw"] + ok["g"] + ok["sc"] + ok["tw"] + ok["m"][:4] + ok["cv"][:8] + ok["m"][4:] + ok["cv"][8:]
    p.append(wait("zV0")); p += v_reads(0, "z"); p.append(wait("zvf0"))
    p += main("slow", False, "z")
    p += epilogue()
    return p

HDR = open("standalone__qk_norm__prompt.s.ref").read().split("; Override launch")[0]
def build():
    rep = []
    pro = prologue(); mn = main("fast", True, ""); ep = epilogue()
    fast = fix_hazards(resolve_waits(pro + mn + ep), rep)
    nm = fix_hazards(resolve_waits([raw("", "waitall")] + main("fast", True, ""), check=False))
    print("est main cycles", simulate(nm), "prologue", simulate(fix_hazards(resolve_waits(prologue()))), "epilogue", simulate(ep), file=sys.stderr)
    for r in rep: print("nop", r, file=sys.stderr)
    slow = fix_hazards(resolve_waits(slow_path()))
    txt = HDR + f"; @launch grid=(256,1,1) block=(256,1,1) lds={LDS_BYTES}\n"
    txt += """.amdgcn_target "amdgcn-amd-amdhsa--gfx950"
.text
.globl standalone__qk_norm__prompt_kernel
.p2align 8
.type standalone__qk_norm__prompt_kernel,@function
standalone__qk_norm__prompt_kernel:
"""
    txt += emit(fast) + "\n" + emit(slow) + "\nL_end:\n    s_endpgm\n"
    txt += f""".section .rodata,"a"
.p2align 6
.amdhsa_kernel standalone__qk_norm__prompt_kernel
  .amdhsa_next_free_vgpr {256 + NAGPR}
  .amdhsa_next_free_sgpr 80
  .amdhsa_accum_offset 256
  .amdhsa_group_segment_fixed_size 0
  .amdhsa_kernarg_size 56
  .amdhsa_user_sgpr_count 2
  .amdhsa_user_sgpr_kernarg_segment_ptr 1
  .amdhsa_system_sgpr_workgroup_id_x 1
.end_amdhsa_kernel
"""
    return txt

if __name__ == "__main__":
    out = [a for a in sys.argv[1:] if not a.startswith("--")]
    open(out[0] if out else "standalone__qk_norm__prompt.s", "w").write(build())
```

```python
import sys
from asmlib import *

V = lambda b, n=1: Reg("v", b, n)
A = lambda b, n=1: Reg("a", b, n)
S = lambda b, n=1: Reg("s", b, n)

STAMP = "--stamp" in sys.argv or "--dbg" in sys.argv
DBG = "--dbg" in sys.argv
SPIN = sum(int(a[7:]) for a in sys.argv if a.startswith("--spin="))
_spin = 0
STMOD = " ".join(a[5:] for a in sys.argv if a.startswith("--st="))
ABL = [a[6:] for a in sys.argv if a.startswith("--abl=")]
vTid = V(0); vDmaK = V(1); vDmaV = V(2); vVT = V(3); vSS = V(4, 4); vTR = V(8, 2); vMask = V(10, 2)
vIdx = V(12); vC = V(13); vWr = V(14); vTmp = V(15); vRd = V(16, 3); vOut = V(19)
vOnes = V(20, 4)
vG = V(24, 4); vSs = V(28); vRr = V(29); vRr2 = V(30); vDummy = V(31); vBd = V(32, 4)
vM = V(36, 8)
vSb = [V(48, 16), V(64, 16), V(80, 16)]
vKf = [V(96 + 8 * i, 8) for i in range(4)]
vVf = [V(128, 8), V(136, 8)]
vX = V(144, 16); vT = V(160, 16); vY = V(176, 16)
Qf = [V(192, 8), V(200, 8)] + [A(120 + 8 * i, 8) for i in range(6)]
Of = [V(208, 16), V(224, 16)] + [A(16 * i, 16) for i in range(6)]
Lf = [V(240, 4), V(244, 4)] + [A(96 + 4 * i, 4) for i in range(6)]
NAGPR = 168
sQp = S(4, 2); sKp = S(6, 2); sVp = S(8, 2); sTp = S(10, 2); sOp = S(12, 2)
srdQ = S(16, 4); srdK = S(20, 4); srdV = S(24, 4); srdO = S(28, 4)
sW = S(32); sHead = S(33); sKoff = S(34); sQoff = S(35); sWb = S(36); sT = S(37); sTmp = S(38); sTmp2 = S(39)
sM1 = S(40, 2); sM2 = S(42, 2); sM3 = S(44, 2); sPc = S(46, 2); sDoff = S(48); sToff = S(49); sDbg = S(50, 2); srdD = S(52, 4)
sSt = [S(56 + 2 * i, 2) for i in range(12)]
XCH = 131072
LDS_BYTES = XCH + 16384
SLOT = 8192
M32 = "v_mfma_f32_32x32x16_bf16"; M4 = "v_mfma_f32_4x4x4_16b_bf16"
S32 = "v_smfmac_f32_32x32x32_bf16"; S16 = "v_smfmac_f32_16x16x64_bf16"
TH_BITS = 0x41800000

def stamp(i):
    if SPIN and i == 0: return [raw(f"s_memrealtime {sSt[i]}", "salu")]
    if not STAMP: return []
    r = [raw(f"s_memrealtime {sSt[i]}", "salu")]
    if i in (3, 4): r.append(raw(f"s_memtime {sSt[i+3]}", "salu"))
    return r

def dma_pair(kind, p, tagp=""):
    off = (p % 4) * SLOT + (4096 if kind == "V" else 0)
    ops = [salu("s_add_u32", "m0", sWb, off), salu("s_add_u32", sDoff, sKoff, p * 4096)]
    ops[0].wr = ["m0"]
    srd = srdK if kind == "K" else srdV
    vo = vDmaK if kind == "K" else vDmaV
    for j in range(4):
        ops.append(dma(vo, srd, sDoff, 1024 * j, tag=f"{tagp}{kind}{p}"))
    return ops

def norm_ops(off, need, X, T, Y, G, ss, rr, rr2, Bd, dst, scale=None, tg="n"):
    o = {}
    o["xr"] = [ds_read("ds_read_b128", X.sub(4 * j, 4), vSS[j], off, tag=tg + "x", need=[need]) for j in range(4)]
    o["xw"] = [wait(tg + "x")]
    o["g"] = [mfma(M4, G, X.sub(2 * i, 2), X.sub(2 * i, 2), 0 if i == 0 else G) for i in range(8)]
    sc = [valu("v_cndmask_b32", ss, G[0], G[1], sM1), valu("v_cndmask_b32", ss, ss, G[2], sM2), valu("v_cndmask_b32", ss, ss, G[3], sM3),
          valu("v_sqrt_f32", ss, ss), valu("v_add_f32", ss, "0x358637bd", ss), valu("v_rcp_f32", ss, ss)]
    if scale is not None: sc.append(valu("v_mul_f32", ss, ss, scale))
    sc += [valu("v_cvt_pk_bf16_f32", rr, ss, ss), valu("v_cvt_pk_bf16_f32", rr2, ss, ss), permswap(rr, rr2),
           valu("v_and_b32", Bd[0], rr, vMask[0]), valu("v_and_b32", Bd[1], rr, vMask[1]),
           valu("v_and_b32", Bd[2], rr2, vMask[0]), valu("v_and_b32", Bd[3], rr2, vMask[1])]
    o["sc"] = sc
    o["tr"] = [ds_read("ds_read_b64_tr_b16", T.sub(8 * t + 2 * m, 2), vTR[m >> 1], off + 2048 * t + 8 * (m & 1), tag=tg + "t", need=[need])
               for t in range(2) for m in range(4)]
    o["tw"] = [wait(tg + "t")]
    yb = lambda t: Y.sub(16 * t, 16) if Y.n == 32 else Y
    o["m"] = [mfma(M4, yb(t).sub(4 * m, 4), T.sub(8 * t + 2 * m, 2), Bd.sub(2 * t, 2), 0) for t in range(2) for m in range(4)]
    o["cv"] = [valu("v_cvt_pk_bf16_f32", dst[t][i], yb(t)[2 * i], yb(t)[2 * i + 1]) for t in range(2) for i in range(8)]
    return o

def v_reads(kt, tagp=""):
    off = ((kt >> 1) % 4) * SLOT + (kt & 1) * 2048
    return [ds_read("ds_read_b64_tr_b16", vVf[kt % 2].sub(4 * p + 2 * u, 2), vVT, off + 1024 * p + 256 * u, tag=f"{tagp}vf{kt}", need=[f"{tagp}V{kt>>1}"])
            for p in range(2) for u in range(2)]

def order():
    seq = []
    for p in range(7):
        seq += [(2 * p, j) for j in range(8)] + [(2 * p + 1, j) for j in range(8)]
    for s_ in (1, 2, 3, 0):
        seq += [(14, 2 * s_), (14, 2 * s_ + 1), (15, 2 * s_), (15, 2 * s_ + 1)]
    return seq

def qk(n, seq):
    kt, j = seq[n]; D = vSb[n % 3]
    return [mfma(M32, D, vKf[kt % 4].sub(0, 4), Qf[j].sub(0, 4), 0), mfma(M32, D, vKf[kt % 4].sub(4, 4), Qf[j].sub(4, 4), D)]
def pv(n, h, seq):
    kt, j = seq[n]; P = vSb[n % 3].sub(8 * h, 8)
    return [smfmac(S32, Of[j], vVf[kt % 2].sub(4 * h, 4), P, vIdx), smfmac(S16, Lf[j], vOnes, P, vIdx)]

EQ = [V(96 + 4 * i, 4) for i in range(4)] + [V(144 + 4 * i, 4) for i in range(12)] + [V(24 + 4 * i, 4) for i in range(3)] + \
     [V(44, 4), V(248, 4), V(252, 4), V(40, 4), V(4, 4)]
EL = [V(1), V(2), V(3), V(8), V(9), V(10)]
PART = 5120

def main(mode, qreads, tagp):
    seq = order()
    sh = {}
    mid = {}
    end = {}
    def put(d, n, g, ops):
        ops = ops if isinstance(ops, list) else [ops]
        if "dma" in ABL: ops = [o for o in ops if o.kind != "vmem"]
        if "ds" in ABL: ops = [o for o in ops if o.kind != "ds"]
        if "m4" in ABL: ops = [o for o in ops if o.kind != "mfma"]
        if "nv" in ABL: ops = [o for o in ops if o.kind not in ("valu", "trans", "perm")]
        if "bar" in ABL: ops = [o for o in ops if "s_barrier" not in o.text]
        d.setdefault((n, g), []).extend(ops)
    pre = {}
    for p in range(8):
        b = 16 * p
        d0 = 5 if (p == 0 and qreads) else 0
        Ls = lambda i: (b + (i + d0) // 2, 3 + 2 * ((i + d0) & 1))
        L0 = lambda i: (b + i // 2, 3 + 2 * (i & 1))
        prevg = lambda ng: (ng[0], ng[1] - 1)
        if p < 7:
            o = norm_ops(((p + 1) % 4) * SLOT, f"{tagp}K{p+1}", vX, vT, vY, vG, vSs, vRr, vRr2, vBd,
                         [vKf[(2 * p + 2) % 4], vKf[(2 * p + 3) % 4]], tg=f"{tagp}n{p+1}")
            put(sh, *prevg(Ls(0)), wait(f"{tagp}K{p+1}"))
            for i in range(4): put(sh, *Ls(i), o["xr"][i])
            put(sh, *prevg(Ls(5)), o["xw"])
            for i in range(8): put(mid, *Ls(5 + i), o["g"][i])
            toff = 8 if d0 == 0 else 4
            for i in range(8): put(sh, *Ls(toff + i), o["tr"][i])
            n_, g_ = Ls(12)
            pos = []; g = g_ + 2
            for cnt in (1, 1, 1, 1, 1, 1, 2, 1, 2, 2):
                pos += [(n_ + g // 6, g % 6)] * cnt; g += 1
            for i, x in enumerate(o["sc"]): put(end, *pos[i], x)
            put(sh, *prevg(Ls(17)), o["tw"])
            for i in range(8):
                n_, g_ = Ls(17 + i)
                put(mid, n_, g_, o["m"][i])
                n2, g2 = (n_, 5) if g_ == 3 else (n_ + 1, 1)
                put(end, n2, g2, o["cv"][2 * i: 2 * i + 2])
        if mode != "max":
            vr = v_reads(2 * p + 1, tagp)
            if p == 7:
                for i in range(4): put(sh, *L0(i), vr[i])
                put(sh, b + 2, 2, wait(f"{tagp}vf{2*p+1}"))
            elif d0:
                for i in range(4): put(sh, b + 5 + i // 2, 2 + 2 * (i & 1), vr[i])
                put(sh, b + 8, 1, wait(f"{tagp}vf{2*p+1}"))
            else:
                for i in range(4): put(sh, *L0(4 + i), vr[i])
                put(sh, b + 7, 4, wait(f"{tagp}vf{2*p+1}"))
            if p < 7:
                vr = v_reads(2 * p + 2, tagp)
                put(sh, *prevg(L0(18)), wait(f"{tagp}V{p+1}"))
                for i in range(4): put(sh, *L0(18 + i), vr[i])
                put(sh, b + 15, 4, wait(f"{tagp}vf{2*p+2}"))
        todo = [("K", p + 3, b + 12), ("V", p + 3, b + 13)] if p + 3 < 8 else []
        if p == 0: todo = [("V", 1, 3), ("K", 2, 7), ("V", 2, 11)] + todo
        for kind, pp, n0 in todo:
            if mode == "max" and kind == "V": continue
            d = dma_pair(kind, pp, tagp)
            put(sh, n0, 0, d[0]); put(sh, n0, 1, d[1])
            put(sh, n0, 2, d[2:4]); put(sh, n0, 4, d[4:6])
    if qreads:
        put(sh, 0, 0, [wait("qw"), raw("s_barrier", "salu")])
        qpos = [(0, 1), (0, 1), (0, 4), (0, 5), (1, 1), (1, 2), (1, 3), (1, 4), (1, 5), (2, 1), (2, 2), (2, 3)]
        k = 0
        for j in range(2, 8):
            for f in range(2):
                put(sh, *qpos[k], ds_read("ds_read_b128", Qf[j].sub(4 * f, 4), vRd[(j >> 1) - 1], (j & 1) * 2048 + 1024 * f, tag=f"q{j}"))
                k += 1
        for j in range(2, 8):
            if j == 2: put(end, 0, 5, wait("q2"))
            else: sh.setdefault((j - 2, 4), []).insert(0, wait(f"q{j}"))
    if mode != "max":
        for s in range(1, 4):
            put(sh, 110, s + 1, [salu("s_sub_u32", sTmp, sW, s), salu("s_and_b32", sTmp, sTmp, 3)])
            put(end, 110, s + 1, [salu("s_lshl_b32", sTmp, sTmp, 15), valu("v_add_u32", vRd[s - 1], sTmp, vDmaV)])
        for s in range(1, 4):
            nb = 112 + 4 * (s - 1)
            for sl in range(2):
                j = 2 * s + sl
                w = [ds_write("ds_write_b128", vWr, Of[j].sub(4 * k, 4), (j - 2) * PART + 1024 * k, tag=f"pw{s}") for k in range(4)]
                w.append(ds_write("ds_write_b32", vWr, Lf[j][0], (j - 2) * PART + 4096, tag=f"pw{s}"))
                n0 = nb + 4 + sl
                for x, g in zip(w, (1, 2, 3, 4, 5)): put(sh, n0, g, x)
            put(sh, nb + 6, 1, [wait(f"pw{s}"), raw("s_barrier", "salu")])
            rr = []
            for sl in range(2):
                j = 2 * s + sl
                rr += [ds_read("ds_read_b128", EQ[(sl * 3 + s - 1) * 4 + q], vRd[s - 1], (j - 2) * PART + 1024 * q, tag=f"pr{s}") for q in range(4)]
                rr.append(ds_read("ds_read_b32", EL[sl * 3 + s - 1], vRd[s - 1], (j - 2) * PART + 4096, tag=f"pr{s}"))
            rpos = [(nb + 6, 2), (nb + 6, 3), (nb + 6, 4), (nb + 6, 5), (nb + 7, 0), (nb + 7, 1), (nb + 7, 2), (nb + 7, 3), (nb + 7, 4), (nb + 7, 5)]
            if s == 3: rpos = [(126, 2), (126, 2), (126, 3), (126, 3), (126, 4), (126, 4), (126, 5), (126, 5), (127, 2), (127, 3)]
            for x, ng in zip(rr, rpos): put(sh, *ng, x)
        e = lambda sl, s, i: EQ[(sl * 3 + s) * 4 + i // 4].sub(i % 4, 2)
        adds = [valu("v_pk_add_f32", e(sl, 0, i), e(sl, 0, i), e(sl, 1, i)) for sl in range(2) for i in range(0, 16, 2)]
        put(sh, 124, 2, wait("pr1", "pr2"))
        for k, x in enumerate(adds): put(end, 124 + k // 4, 3 + 2 * ((k >> 1) & 1), x)
        put(end, 124, 4, [valu("v_add_f32", EL[sl * 3], EL[sl * 3], EL[sl * 3 + 1]) for sl in range(2)])
    prog = [] if qreads else qk(0, seq)
    ne = [3, 3, 3, 2, 3, 2]
    for n in range(128):
        kt, j = seq[n]
        X = vSb[n % 3]
        ms = (qk(n + 1, seq) if n < 127 else [None, None])
        if mode == "max": ms += [None] * 4
        else: ms += (pv(n - 1, 1, seq) if n > 0 else [None, None]) + pv(n, 0, seq)
        prog.append(comment(f"tile {n}: key tile {kt} slot {j}"))
        e = 0
        for g in range(6):
            skip = (("rs" in ABL and g in (3, 5)) or ("pv" in ABL and g in (2, 4)) or ("qk" in ABL and g in (0, 1) and n > 3))
            if ms[g] is not None and not skip: prog.append(ms[g])
            prog += sh.pop((n, g), [])
            for t in range(ne[g]):
                x = X[e]
                if mode == "max":
                    if e & 1: prog.append(valu("v_max3_f32", vM[j], vM[j], X[e - 1], x))
                else:
                    if mode == "slow": prog.append(valu("v_sub_f32", x, x, vM[j]))
                    if "exp" in ABL: pass
                    elif "expmov" in ABL: prog += [valu("v_mov_b32", x, x), valu("v_mov_b32", x, x)]
                    elif "qk" in ABL: prog.append(valu("v_exp_f32", x, "-" + str(x))); prog[-1].rd = x.regs()
                    else: prog.append(valu("v_exp_f32", x, x))
                e += 1
                if t == 0: prog += mid.pop((n, g), [])
            prog += end.pop((n, g), [])
    assert not sh and not mid and not end, (sh.keys(), mid.keys(), end.keys())
    if mode != "max": prog += pv(127, 1, seq)
    return prog

def epilogue():
    p = []
    p.append(wait("pr3"))
    q = lambda sl, s, i: EQ[(sl * 3 + s) * 4 + i // 4].sub(i % 4, 2)
    for sl in range(2):
        p.append(valu("v_add_f32", EL[sl * 3], EL[sl * 3], EL[sl * 3 + 2]))
    p.append(valu("v_add_f32", Lf[0][0], Lf[0][0], EL[0]))
    p.append(valu("v_rcp_f32", Lf[0][0], Lf[0][0]))
    for i in range(0, 8): p.append(valu("v_add_f32", q(0, 0, 2 * (i // 2))[i & 1], q(0, 0, 2 * (i // 2))[i & 1], q(0, 2, 2 * (i // 2))[i & 1]))
    for i in range(8, 16, 2): p.append(valu("v_pk_add_f32", q(0, 0, i), q(0, 0, i), q(0, 2, i)))
    for sl in range(2):
        O = Of[sl]; L = Lf[sl][0]
        if sl == 1:
            p.append(valu("v_add_f32", L, L, EL[sl * 3]))
            p.append(valu("v_rcp_f32", L, L))
            for i in range(0, 16, 2): p.append(valu("v_pk_add_f32", q(sl, 0, i), q(sl, 0, i), q(sl, 2, i)))
        for k in range(2):
            for i in range(8 * k, 8 * k + 8, 2): p.append(valu("v_pk_add_f32", O.sub(i, 2), O.sub(i, 2), q(sl, 0, i)))
            for i in range(8 * k, 8 * k + 8, 2): p.append(valu("v_pk_mul_f32", O.sub(i, 2), O.sub(i, 2), Lf[sl].sub(0, 2), mods="op_sel_hi:[1,0]"))
            D = q(sl, 0, 8 * k)
            D = Reg("v", D.b, 4)
            for i in range(4): p.append(valu("v_cvt_pk_bf16_f32", D[i], O[8 * k + 2 * i], O[8 * k + 2 * i + 1]))
            p.append(bufstore("buffer_store_dwordx4", D, vOut, srdO, sQoff, 2048 * sl + 16 * k, mods=STMOD))
    if STAMP:
        p += stamp(4)
        p.append(raw("s_waitcnt vmcnt(0)", "waitall"))
        p += stamp(5)
        p.append(raw("s_waitcnt lgkmcnt(0)", "waitall"))
        p += [salu("s_lshl_b32", sTmp, S(2), 2), salu("s_add_u32", sTmp, sTmp, sW), salu("s_lshl_b32", sTmp, sTmp, 6), valu("v_mov_b32", V(48), 0)]
        if DBG:
            p += [salu("s_mov_b64", "exec", 1)]
            for i in range(6):
                p.append(valu("v_mov_b32", V(50), sSt[i][0]))
                p.append(valu("v_not_b32", V(51), V(50)))
                p.append(bufstore("buffer_atomic_umax", V(50), V(48), srdD, 0, 8 * i + 4))
                p.append(bufstore("buffer_atomic_umax", V(51), V(48), srdD, 0, 8 * i))
                p.append(nop(2))
            p += [salu("s_sub_u32", sTmp, sSt[7][0], sSt[6][0]), valu("v_mov_b32", V(50), sTmp), bufstore("buffer_atomic_umax", V(50), V(48), srdD, 0, 48)]
        for i in range(0 if DBG else 12):
            p.append(valu("v_mov_b32", V(50), sSt[i][0]))
            p.append(bufstore("buffer_store_dword", V(50), V(48), srdD, sTmp, 4 * i))
            p.append(nop(2))
    if SPIN:
        global _spin; _spin += 1
        p += [label(f"L_spin{_spin}"), raw(f"s_memrealtime {sSt[1]}", "salu"), raw("s_waitcnt lgkmcnt(0)", "waitall"), salu("s_sub_u32", sTmp, sSt[1][0], sSt[0][0]),
              salu("s_cmp_lt_u32", sTmp, SPIN), raw(f"s_cbranch_scc1 L_spin{_spin}", "salu")]
    p.append(raw("s_endpgm", "salu"))
    return p

def initial_dma(tagp, with_q):
    p = []
    if with_q:
        p.append(salu("s_add_u32", "m0", sWb, 3 * SLOT)); p[-1].wr = ["m0"]
        p.append(nop(1))
        for j in range(4): p.append(dma(vDmaK, srdQ, sQoff, 1024 * j, tag="Q"))
    p += dma_pair("K", 0, tagp) + dma_pair("V", 0, tagp) + dma_pair("K", 1, tagp)
    return p

def interleave(a, b):
    out = []
    for i in range(max(len(a), len(b))):
        if i < len(a): out.append(a[i])
        if i < len(b): out.append(b[i])
    return out

def prologue():
    p = []
    p += stamp(0)
    p.append(raw("s_load_dwordx8 s[4:11], s[0:1], 0", "salu", wr=S(4, 8).regs()))
    p.append(raw("s_load_dwordx2 s[12:13], s[0:1], 32", "salu", wr=S(12, 2).regs()))
    if STAMP: p.append(raw(f"s_load_dwordx2 {sDbg}, s[0:1], {40 if DBG else 48}", "salu", wr=sDbg.regs()))
    p.append(salu("s_cmp_ge_u32", S(2), 256))
    p.append(raw("s_cbranch_scc1 L_end", "salu"))
    p.append(raw(f"s_getpc_b64 {sPc}", "salu", wr=sPc.regs()))
    if "pfall" in ABL:
        p.append(valu("v_lshlrev_b32", vTmp, 7, vTid))
    else:
        p.append(salu("s_and_b32", sTmp, S(2), 0xf8))
        p.append(valu("v_lshrrev_b32", vTmp, 5, vTid))
        p.append(valu("v_add_lshl_u32", vTmp, vTmp, sTmp, 7))
    if "nopf" not in ABL:
        p.append(I(f"global_load_dword {vDummy}, {vTmp}, {sPc}", "vmem", rd=regs_of(vTmp, sPc), wr=regs_of(vDummy), tag="pf"))
    p.append(valu("v_lshrrev_b32", vTmp, 6, vTid))
    p.append(valu("v_and_b32", vTid, 63, vTid))
    p.append(I(f"v_readfirstlane_b32 {sW}, {vTmp}", "valu", rd=regs_of(vTmp), wr=regs_of(sW)))
    lane = vTid
    t0, t1, t2, t3 = V(48), V(49), V(50), V(51)
    p.append(valu("v_lshlrev_b32", vDmaV, 4, lane))
    p.append(valu("v_and_b32", t0, 0x30, lane))
    p.append(valu("v_xor_b32", vDmaK, t0, vDmaV))
    p += [salu("s_and_b32", sHead, S(2), 7), salu("s_lshl_b32", sHead, sHead, 2), salu("s_bfe_u32", sTmp, S(2), 0x20003), salu("s_add_u32", sHead, sHead, sTmp),
          salu("s_lshl_b32", sWb, sW, 15), salu("s_lshl_b32", sTmp, sHead, 17), salu("s_add_u32", sKoff, sTmp, sWb),
          salu("s_lshr_b32", sTmp2, S(2), 5), salu("s_lshl_b32", sTmp2, sTmp2, 14), salu("s_add_u32", sQoff, sTmp, sTmp2),
          salu("s_lshl_b32", sTmp2, sW, 12), salu("s_add_u32", sQoff, sQoff, sTmp2),
          salu("s_lshl_b32", sToff, sHead, 1), salu("s_and_b32", sToff, sToff, 0x3c)]
    for srd in (srdQ, srdK, srdV, srdO):
        p += [salu("s_mov_b32", srd[2], 0x400000), salu("s_mov_b32", srd[3], 0x20000)]
    q = []
    q.append(valu("v_lshlrev_b32", t0, 6, lane))
    q.append(valu("v_lshlrev_b32", t1, 2, lane))
    q.append(valu("v_and_b32", t1, 0x30, t1))
    q.append(valu("v_add3_u32", vSS[0], t0, t1, sWb))
    for j in range(1, 4): q.append(valu("v_xor_b32", vSS[j], 16 * j, vSS[0]))
    q.append(valu("v_and_b32", t0, 3, lane))
    q.append(valu("v_bfe_u32", t1, lane, 2, 2))
    q.append(valu("v_bfe_u32", t2, lane, 4, 1))
    q.append(valu("v_lshrrev_b32", t3, 5, lane))
    a, b_ = V(52), V(53)
    q.append(valu("v_lshlrev_b32", a, 10, t2))
    q.append(valu("v_lshl_add_u32", a, t0, 8, a))
    q.append(valu("v_lshl_add_u32", a, t1, 6, a))
    q.append(valu("v_lshlrev_b32", b_, 1, t3))
    q.append(valu("v_xor_b32", b_, b_, t0))
    q.append(valu("v_lshl_add_u32", a, b_, 4, a))
    q.append(valu("v_add_u32", vTR[0], sWb, a))
    q.append(valu("v_xor_b32", vTR[1], 16, vTR[0]))
    q.append(valu("v_lshlrev_b32", a, 9, t3))
    q.append(valu("v_lshl_add_u32", a, t1, 6, a))
    q.append(valu("v_lshl_add_u32", a, t2, 4, a))
    q.append(valu("v_and_b32", b_, 1, t0))
    q.append(valu("v_lshl_add_u32", a, b_, 5, a))
    q.append(valu("v_lshrrev_b32", b_, 1, t0))
    q.append(valu("v_lshl_add_u32", a, b_, 3, a))
    q.append(valu("v_add_u32", a, sWb, a))
    q.append(valu("v_add_u32", vVT, 0x1000, a))
    q.append(valu("v_and_b32", b_, 1, lane))
    q.append(valu("v_lshlrev_b32", b_, 4, b_))
    q.append(valu("v_mov_b32", a, 0xffff))
    q.append(valu("v_lshlrev_b32", a, b_, a))
    for m, pat in ((sM1, 0x22222222), (sM2, 0x44444444), (sM3, 0x88888888)):
        q += [salu("s_mov_b32", m[0], pat), salu("s_mov_b32", m[1], pat)]
    q += [salu("s_mov_b32", "vcc_lo", 0xcccccccc), salu("s_mov_b32", "vcc_hi", 0xcccccccc)]
    q.append(valu("v_cndmask_b32", vMask[1], 0, a, "vcc"))
    q.append(valu("v_xor_b32", vMask[0], vMask[1], a))
    q.append(valu("v_mov_b32", vIdx, 0xdddddddd))
    q += [salu("s_mov_b32", "vcc_lo", 0xf0f0f0f0), salu("s_mov_b32", "vcc_hi", 0xf0f0f0f0)]
    q.append(valu("v_mov_b32", a, 0x3f803f80))
    q.append(valu("v_cndmask_b32", vOnes[2], 0, a, "vcc"))
    q.append(valu("v_cndmask_b32", vOnes[3], 0, a, "vcc"))
    q.append(valu("v_xor_b32", vOnes[0], vOnes[2], a))
    q.append(valu("v_xor_b32", vOnes[1], vOnes[2], a))
    q.append(valu("v_add_u32", vWr, sWb, vDmaV))
    q.append(valu("v_and_b32", a, 31, lane))
    q.append(valu("v_lshlrev_b32", a, 6, a))
    q.append(valu("v_lshl_add_u32", vOut, t3, 5, a))
    for s in range(4):
        q += [salu("s_add_u32", sTmp, sW, s), salu("s_and_b32", sTmp, sTmp, 3), salu("s_lshl_b32", sTmp, sTmp, 12), salu("s_add_u32", sTmp, sTmp, XCH)]
        q.append(valu("v_add_u32", vTmp if s == 0 else vRd[s - 1], sTmp, vDmaV))
    zr = V(56, 4)
    z = [mfma(M32, Of[j], zr, zr, 0) for j in range(8)] + [mfma("v_mfma_f32_16x16x32_bf16", Lf[j], zr, zr, 0) for j in range(8)]
    for i in range(4): p.append(valu("v_mov_b32", zr[i], 0))
    p.append(raw("s_waitcnt lgkmcnt(0)", "salu"))
    p += stamp(1)
    if "stouch" in ABL:
        p.append(raw(f"s_load_dword s80, {sKp}, {sKoff}", "salu", rd=regs_of(sKp, sKoff), wr=["s80"]))
        p.append(raw(f"s_load_dword s81, {sVp}, {sKoff}", "salu", rd=regs_of(sVp, sKoff), wr=["s81"]))
        p.append(raw(f"s_load_dword s82, {sOp}, {sQoff}", "salu", rd=regs_of(sOp, sQoff), wr=["s82"]))
    for srd, ptr in ((srdQ, sQp), (srdK, sKp), (srdV, sVp), (srdO, sOp)):
        p += [salu("s_mov_b32", srd[0], ptr[0]), salu("s_mov_b32", srd[1], ptr[1])]
    if "vtouch" in ABL:
        p += [salu("s_lshr_b32", sTmp, S(2), 3), salu("s_and_b32", sTmp, sTmp, 3),
              salu("s_cmp_eq_u32", sTmp, 1), salu("s_cselect_b64", S(80, 2), sKp, sQp),
              salu("s_cmp_eq_u32", sTmp, 2), salu("s_cselect_b64", S(80, 2), sVp, S(80, 2)),
              salu("s_cmp_eq_u32", sTmp, 3), salu("s_cselect_b64", S(80, 2), sOp, S(80, 2)),
              salu("s_mov_b32", S(82), 0x400000), salu("s_mov_b32", S(83), 0x20000)]
        p.append(bufload("buffer_load_dword", V(47), vDmaV, S(80, 4), sKoff, 0, tag="pf2"))
    d = initial_dma("", True)
    if "il" in ABL:
        Qd, Kd, Vd, K1 = d[:6], d[6:12], d[12:18], d[18:]
        m0 = lambda x: x[0]
        d = Qd[:3] + Kd[:3] + Vd[:3] + [Qd[0], nop(1)] + Qd[3:] + [Kd[0], nop(1)] + Kd[3:] + [Vd[0], nop(1)] + Vd[3:] + K1
        p += d[:19]; d = [None] * 12 + d[19:]
    else:
        p += d[:12]
    p.append(raw(f"s_load_dword {sT}, {sTp}, {sToff}", "salu", rd=regs_of(sTp, sToff), wr=regs_of(sT)))
    p += stamp(8)
    if STAMP:
        p += [salu("s_mov_b32", srdD[0], sDbg[0]), salu("s_mov_b32", srdD[1], sDbg[1]), salu("s_mov_b32", srdD[2], 256 if DBG else 0x100000), salu("s_mov_b32", srdD[3], 0x20000)]
    k = 0
    for i, x in enumerate(q):
        if i % 6 == 0 and k < 8: p.append(z[k]); k += 1
        elif i % 3 == 0 and 8 <= k < 16: p.append(z[k]); k += 1
        p.append(x)
    p += z[k:]
    p += stamp(9)
    p += d[12:]
    if "tlb" in ABL: p.append(bufload("buffer_load_dword", vDummy, vOut, srdO, sQoff, 0, tag="pf2"))
    p += stamp(10)
    p.append(raw("s_waitcnt lgkmcnt(0)", "salu"))
    p += [salu("s_lshl_b32", sTmp, sT, 16), salu("s_and_b32", sTmp2, sT, 0xffff0000), salu("s_bitcmp1_b32", sHead, 0),
          salu("s_cselect_b32", sT, sTmp2, sTmp)]
    p[-2].rd += p[-2].wr; p[-2].wr = []
    p.append(valu("v_mov_b32", vC, 0x3fb8aa3b))
    p.append(valu("v_mul_f32", vC, sT, vC))
    p.append(salu("s_and_b32", sT, sT, 0x7fffffff))
    oq = norm_ops(3 * SLOT, "Q", V(64, 16), V(80, 16), V(112, 16), V(44, 4), V(248), V(249), V(250), V(252, 4), [Qf[0], Qf[1]], scale=vC, tg="nq")
    ok = norm_ops(0, "K0", vX, vT, vY, vG, vSs, vRr, vRr2, vBd, [vKf[0], vKf[1]], tg="n0")
    p.append(wait("Q")); p += stamp(2)
    p += oq["xr"]
    p.append(wait("K0")); p += stamp(11); p += ok["xr"]
    p += oq["tr"][:4] + ok["tr"][:3]
    p += oq["xw"]
    fill = ok["tr"][3:4] + oq["tr"][4:] + ok["tr"][4:]
    p += [oq["g"][0], fill[0], fill[1], oq["g"][1]] + ok["xw"]
    for i in range(6): p += [ok["g"][i], oq["g"][2 + i], fill[2 + i]]
    p += [ok["g"][6], fill[8], oq["sc"][0], ok["g"][7]]
    p += oq["sc"][1:4]
    p += interleave(oq["sc"][4:], ok["sc"])
    p += oq["tw"] + ok["tw"]
    p += interleave(oq["m"][:4] + ok["m"][:4], [wait("V0")] + v_reads(0) + oq["cv"][:3])
    p += oq["cv"][3:8] + ok["cv"][:8]
    p.append(salu("s_cmp_gt_u32", sT, TH_BITS))
    p += [oq["m"][4]] + qk(0, order())[:1] + oq["m"][5:]
    p += qk(0, order())[1:]
    p += oq["cv"][8:]
    wq = [ds_write("ds_write_b128", vTmp, Qf[t].sub(4 * f, 4), 2048 * t + 1024 * f, tag="qw") for t in range(2) for f in range(2)]
    p += interleave(ok["m"][4:], wq)
    p += ok["cv"][8:]
    p.append(wait("vf0"))
    p.append(raw("s_cbranch_scc1 L_slow", "salu"))
    p += stamp(3)
    return p

def slow_path():
    p = [label("L_slow"), raw("s_waitcnt vmcnt(0) lgkmcnt(0)", "waitall"), nop(16)]
    for j in range(8): p.append(valu("v_mov_b32", vM[j], 0xff800000))
    p += main("max", True, "")
    p += [raw("s_waitcnt vmcnt(0) lgkmcnt(0)", "waitall"), nop(16), raw("s_barrier", "salu")]
    t0 = V(48); a = V(49)
    p.append(valu("v_lshrrev_b32", a, 2, vDmaV))
    for j in range(8):
        p += [valu("v_mov_b32", t0, vM[j]), permswap(vM[j], t0), valu("v_max_f32", vM[j], vM[j], t0)]
        p += [salu("s_lshl_b32", sTmp, sW, 1), salu("s_add_u32", sTmp, sTmp, j), salu("s_and_b32", sTmp, sTmp, 7), salu("s_lshl_b32", sTmp, sTmp, 8),
              salu("s_add_u32", sTmp, sTmp, XCH), valu("v_add_u32", V(56 + j), sTmp, a), salu("s_lshl_b32", sTmp2, sW, 11),
              valu("v_add_u32", V(50), sTmp2, V(56 + j)), ds_write("ds_write_b32", V(50), vM[j], 0, tag="mw")]
    p += [wait("mw"), raw("s_barrier", "salu")]
    for j in range(8):
        for w in range(4): p.append(ds_read("ds_read_b32", V(64 + w), V(56 + j), 2048 * w, tag="mr"))
        p.append(wait("mr"))
        p += [valu("v_max_f32", vM[j], V(64), V(65)), valu("v_max3_f32", vM[j], vM[j], V(66), V(67))]
    p += initial_dma("z", False)
    ok = norm_ops(0, "zK0", vX, vT, vY, vG, vSs, vRr, vRr2, vBd, [vKf[0], vKf[1]], tg="zn0")
    p.append(wait("zK0"))
    p += ok["xr"] + ok["tr"] + ok["xw"] + ok["g"] + ok["sc"] + ok["tw"] + ok["m"][:4] + ok["cv"][:8] + ok["m"][4:] + ok["cv"][8:]
    p.append(wait("zV0")); p += v_reads(0, "z"); p.append(wait("zvf0"))
    p += main("slow", False, "z")
    p += epilogue()
    return p

HDR = open("standalone__qk_norm__prompt.s.ref").read().split("; Override launch")[0]
def build():
    rep = []
    pro = prologue(); mn = main("fast", True, ""); ep = epilogue()
    fast = fix_hazards(resolve_waits(pro + mn + ep), rep)
    nm = fix_hazards(resolve_waits([raw("", "waitall")] + main("fast", True, ""), check=False))
    print("est main cycles", simulate(nm), "prologue", simulate(fix_hazards(resolve_waits(prologue()))), "epilogue", simulate(ep), file=sys.stderr)
    for r in rep: print("nop", r, file=sys.stderr)
    slow = fix_hazards(resolve_waits(slow_path()))
    txt = HDR + f"; @launch grid=(256,1,1) block=(256,1,1) lds={LDS_BYTES}\n"
    txt += """.amdgcn_target "amdgcn-amd-amdhsa--gfx950"
.text
.globl standalone__qk_norm__prompt_kernel
.p2align 8
.type standalone__qk_norm__prompt_kernel,@function
standalone__qk_norm__prompt_kernel:
"""
    txt += emit(fast) + "\n" + emit(slow) + "\nL_end:\n    s_endpgm\n"
    txt += f""".section .rodata,"a"
.p2align 6
.amdhsa_kernel standalone__qk_norm__prompt_kernel
  .amdhsa_next_free_vgpr {256 + NAGPR}
  .amdhsa_next_free_sgpr 96
  .amdhsa_accum_offset 256
  .amdhsa_group_segment_fixed_size 0
  .amdhsa_kernarg_size 56
  .amdhsa_user_sgpr_count 2
  .amdhsa_user_sgpr_kernarg_segment_ptr 1
  .amdhsa_system_sgpr_workgroup_id_x 1
.end_amdhsa_kernel
"""
    return txt

if __name__ == "__main__":
    out = [a for a in sys.argv[1:] if not a.startswith("--")]
    open(out[0] if out else "standalone__qk_norm__prompt.s", "w").write(build())
```
